```python
import torch

def _softmax(x, axis=-1):
    return torch.softmax(x, dim=axis)
def _gelu(x):
    return torch.nn.functional.gelu(x, approximate="tanh")
def _silu(x):
    return torch.nn.functional.silu(x)
def _sigmoid(x):
    return torch.sigmoid(x)
def _layernorm(x, axis=-1, eps=1e-5):
    m = x.mean(dim=axis, keepdim=True)
    v = x.var(dim=axis, keepdim=True, unbiased=False)
    return (x - m) / torch.sqrt(v + eps)
def _scatter_add(tgt, idx, src, axis=0):
    return tgt.clone().index_add_(axis, idx, src)
def _segment_sum(src, seg, n):
    out = torch.zeros((n,) + src.shape[1:], dtype=src.dtype)
    return out.index_add_(0, seg, src)
def _pad(x, pw):
    flat = tuple(v for pair in reversed(pw) for v in pair)
    return torch.nn.functional.pad(x, flat)

kernel_name = 'parallel_sum__ssm_conv_s4__mixer_channel_mlp__prompt'

def setup_inputs():

    _w = (lambda a: (lambda t: t.to(torch.bfloat16) if t.is_floating_point() else t)(torch.as_tensor(a)))
    def _A_setup():
        B, L, D, N = 1, 2048, 512, 128
        A_re = -(lambda _x: torch.exp(torch.as_tensor(_x)))((lambda *s: torch.randn(*s, dtype=torch.bfloat16) * 3.2)(D, N))
        A_im = torch.pi * (lambda *s: torch.randn(*s, dtype=torch.bfloat16) * 0.05)(D, N)
        B_re = (lambda *s: torch.randn(*s, dtype=torch.bfloat16) * 0.1)(D, N)
        B_im = (lambda *s: torch.randn(*s, dtype=torch.bfloat16) * 0.1)(D, N)
        C_re = (lambda *s: torch.randn(*s, dtype=torch.bfloat16) * 0.1)(D, N)
        C_im = (lambda *s: torch.randn(*s, dtype=torch.bfloat16) * 0.1)(D, N)
        log_dt = (lambda *s: torch.randn(*s, dtype=torch.bfloat16) * 0.05)(D) * 0.5 - 4.0
        Dskip = (lambda *s: torch.randn(*s, dtype=torch.bfloat16) * 0.05)(D)
        return {
            "u": _w((lambda *s: torch.randn(*s, dtype=torch.bfloat16) * 0.05)(B, L, D)),
            "A_re": _w(A_re),
            "A_im": _w(A_im),
            "B_re": _w(B_re),
            "B_im": _w(B_im),
            "C_re": _w(C_re),
            "C_im": _w(C_im),
            "log_dt": _w(log_dt),
            "Dskip": _w(Dskip),
        }
    _A_in = _A_setup()

    def _B_setup():
        B, S, D, F = 1, 2048, 512, 1792
        return {
            "x": _w((lambda *s: torch.randn(*s, dtype=torch.bfloat16) * 0.05)(B, S, D)),
            "w1": _w((lambda *s: torch.randn(*s, dtype=torch.bfloat16) * 1.6)(D, F) * (D ** -0.5)),
            "b1": _w((lambda *s: torch.randn(*s, dtype=torch.bfloat16) * 0.8)(F)),
            "w2": _w((lambda *s: torch.randn(*s, dtype=torch.bfloat16) * 0.05)(F, D) * (F ** -0.5)),
            "b2": _w((lambda *s: torch.randn(*s, dtype=torch.bfloat16) * 0.05)(D)),
        }
    _B_in = _B_setup()

    return {
        "A_u": _A_in["u"],
        "A_A_re": _A_in["A_re"],
        "A_A_im": _A_in["A_im"],
        "A_B_re": _A_in["B_re"],
        "A_B_im": _A_in["B_im"],
        "A_C_re": _A_in["C_re"],
        "A_C_im": _A_in["C_im"],
        "A_log_dt": _A_in["log_dt"],
        "A_Dskip": _A_in["Dskip"],
        "B_x": _B_in["x"],
        "B_w1": _B_in["w1"],
        "B_b1": _B_in["b1"],
        "B_w2": _B_in["w2"],
        "B_b2": _B_in["b2"],
    }

def reference(A_u, A_A_re, A_A_im, A_B_re, A_B_im, A_C_re, A_C_im, A_log_dt, A_Dskip, B_x, B_w1, B_b1, B_w2, B_b2):
    def _A_ref(u, A_re, A_im, B_re, B_im, C_re, C_im, log_dt, Dskip):
        Bsz, L, D = u.shape
        dt = torch.exp(log_dt)[:, None]
        A = A_re + 1j * A_im
        Bc = B_re + 1j * B_im
        Cc = C_re + 1j * C_im
        logdA = dt * A
        dB = dt * Bc
        l = (lambda x, dt: x.to(dt))(torch.arange(L), A_re.dtype)
        P = torch.exp(logdA[:, :, None] * l[None, None, :])
        K = torch.einsum("dn,dnl,dn->dl", Cc, P, dB).real
        L2 = 2 * L
        Kp = _pad(K, ((0, 0), (0, L)))
        up = (lambda x, *d: x.permute(*d))(u, 0, 2, 1)
        up = _pad(up, ((0, 0), (0, 0), (0, L)))
        Kf = (lambda x, axes=(-2,-1): torch.fft.rfft2(x.float(), dim=axes))(Kp[:, None, :], axes=(-2, -1))
        Uf = (lambda x, axes=(-2,-1): torch.fft.rfft2(x.float(), dim=axes))(up[:, :, None, :], axes=(-2, -1))
        Yf = Uf * Kf[None, :, :, :]
        y = (lambda x, s, axes=(-2,-1): torch.fft.irfft2(x, s=s, dim=axes).to(torch.bfloat16))(Yf, (1, L2), axes=(-2, -1))[:, :, 0, :L]
        y = (lambda x, *d: x.permute(*d))(y, 0, 2, 1) + u * Dskip[None, None, :]
        return y

    def _B_ref(x, w1, b1, w2, b2):
        y = _layernorm(x, axis=-1)
        h = _gelu(torch.einsum("bsd,df->bsf", y, w1) + b1)
        return torch.einsum("bsf,fd->bsd", h, w2) + b2

    x = A_u
    xn = _layernorm(x, axis=-1)
    return x + _A_ref(xn, A_A_re, A_A_im, A_B_re, A_B_im, A_C_re, A_C_im, A_log_dt, A_Dskip) + _B_ref(xn, B_w1, B_b1, B_w2, B_b2)
```

```python
N_G1, N_CV = 224, 256
N_MID = N_G1 + N_CV
MID_LDS = 73728
MID_VGPR = 168
N_FIN = 256
FIN_LDS = 69632
FIN_VGPR = 128

def emit(G):
    e, vr, srd = G.e, G.vr, G.srd
    GELU_C = 0xc0135761
    e(".p2align 8")
    e("mid_kernel:")
    e(f"s_cmp_ge_u32 s2, {N_MID}")
    e("s_cbranch_scc1 mid_end")
    e("s_load_dwordx2 s[4:5], s[0:1], 128")
    e("s_waitcnt lgkmcnt(0)")
    srd(8, 4, G.WS_REC)
    e(f"s_cmp_ge_u32 s2, {N_G1}")
    e("s_cbranch_scc1 mid_conv")
    e("s_mul_i32 s12, s2, 4682")
    e("s_lshr_b32 s12, s12, 16")
    e("s_mul_i32 s13, s12, 14")
    e("s_sub_u32 s13, s2, s13")
    e("s_lshl_b32 s14, s12, 17")
    e(f"s_add_u32 s14, s14, {G.Y2_OFF}")
    e("s_lshl_b32 s15, s13, 17")
    e(f"s_add_u32 s15, s15, {G.W1T_OFF}")
    e("v_lshrrev_b32 v1, 3, v0")
    e("v_and_b32 v2, 7, v0")
    e("v_lshlrev_b32 v3, 10, v1")
    e("v_lshl_add_u32 v3, v2, 4, v3")
    e("v_mul_u32_u24 v4, 144, v1")
    e("v_lshl_add_u32 v4, v2, 4, v4")
    e("v_add_u32 v14, 18432, v4")
    e("v_lshrrev_b32 v5, 6, v0")
    e("v_and_b32 v6, 31, v0")
    e("v_bfe_u32 v7, v0, 5, 1")
    e("v_lshrrev_b32 v8, 1, v5")
    e("v_and_b32 v9, 1, v5")
    e("v_lshl_add_u32 v10, v8, 6, v6")
    e("v_mul_u32_u24 v10, 144, v10")
    e("v_lshl_add_u32 v10, v7, 4, v10")
    e("v_lshl_add_u32 v11, v9, 6, v6")
    e("v_mul_u32_u24 v11, 144, v11")
    e("v_lshl_add_u32 v11, v7, 4, v11")
    e("v_add_u32 v11, 18432, v11")
    ACC = 64
    for i in range(64):
        e(f"v_mov_b32 v{ACC+i}, 0")
    ST = 16
    FR = 48
    def loads(c):
        for i in range(4):
            e(f"s_add_u32 s16, s14, {c*128 + i*32768}")
            e(f"buffer_load_dwordx4 {vr(ST+4*i,4)}, v3, s[8:11], s16 offen")
        for i in range(4):
            e(f"s_add_u32 s16, s15, {c*128 + i*32768}")
            e(f"buffer_load_dwordx4 {vr(ST+16+4*i,4)}, v3, s[8:11], s16 offen")
    def writes(b):
        for i in range(4):
            e(f"ds_write_b128 v4, {vr(ST+4*i,4)} offset:{b*36864 + i*32*144}")
        for i in range(4):
            e(f"ds_write_b128 v14, {vr(ST+16+4*i,4)} offset:{b*36864 + i*32*144}")
    loads(0)
    e("s_waitcnt vmcnt(0)")
    writes(0)
    e("s_waitcnt lgkmcnt(0)")
    e("s_barrier")
    for c in range(8):
        if c < 7: loads(c+1)
        b = c & 1
        for ks in range(4):
            o = b*36864 + ks*32
            e(f"ds_read_b128 {vr(FR,4)}, v10 offset:{o}")
            e(f"ds_read_b128 {vr(FR+4,4)}, v10 offset:{o+32*144}")
            e(f"ds_read_b128 {vr(FR+8,4)}, v11 offset:{o}")
            e(f"ds_read_b128 {vr(FR+12,4)}, v11 offset:{o+32*144}")
            e("s_waitcnt lgkmcnt(0)")
            for nt in range(2):
                for mt in range(2):
                    a = ACC + 16*(2*nt+mt)
                    e(f"v_mfma_f32_32x32x16_bf16 {vr(a,16)}, {vr(FR+8+4*nt,4)}, {vr(FR+4*mt,4)}, {vr(a,16)}")
        if c < 7:
            e("s_waitcnt vmcnt(0)")
            writes(b ^ 1)
            e("s_waitcnt lgkmcnt(0)")
            e("s_barrier")
    e("s_nop 15")
    e("s_nop 7")
    e("s_load_dwordx2 s[6:7], s[0:1], 88")
    e("s_waitcnt lgkmcnt(0)")
    srd(16, 6, 1792*2)
    e("s_lshl_b32 s20, s13, 8")
    e("v_lshlrev_b32 v12, 7, v9")
    e("v_lshl_add_u32 v12, v7, 3, v12")
    e("v_add_u32 v12, s20, v12")
    e("v_lshl_add_u32 v13, v8, 6, v6")
    e("s_mov_b32 s21, 3584")
    e("v_mul_lo_u32 v13, v13, s21")
    e("v_add_u32 v13, v13, v12")
    e("s_mul_i32 s22, s12, 458752")
    e(f"s_add_u32 s22, s22, {G.H_OFF}")
    for nt in range(2):
        for g in range(4):
            e(f"buffer_load_dwordx2 {vr(16+2*g,2)}, v12, s[16:19], 0 offen offset:{nt*64+g*16}")
        e("s_waitcnt vmcnt(0)")
        for mt in range(2):
            a = ACC + 16*(2*nt+mt)
            for g in range(4):
                x = 24
                for j in range(4):
                    e(f"v_mov_b32 v{x+j}, v{a+4*g+j}")
                G.rbf_inplace(x, x+1, 30); G.rbf_inplace(x+2, x+3, 30)
                e(f"v_lshlrev_b32 v28, 16, v{16+2*g}")
                e(f"v_add_f32 v{x}, v{x}, v28")
                e(f"v_and_b32 v28, 0xffff0000, v{16+2*g}")
                e(f"v_add_f32 v{x+1}, v{x+1}, v28")
                e(f"v_lshlrev_b32 v28, 16, v{17+2*g}")
                e(f"v_add_f32 v{x+2}, v{x+2}, v28")
                e(f"v_and_b32 v28, 0xffff0000, v{17+2*g}")
                e(f"v_add_f32 v{x+3}, v{x+3}, v28")
                G.rbf_inplace(x, x+1, 30); G.rbf_inplace(x+2, x+3, 30)
                for j in range(4):
                    v = x + j
                    e(f"v_mul_f32 v28, v{v}, v{v}")
                    e(f"v_mul_f32 v28, 0x3d372713, v28")
                    e(f"v_fma_f32 v28, v28, v{v}, v{v}")
                    e(f"v_mul_f32 v28, {GELU_C}, v28")
                    e(f"v_exp_f32 v28, v28")
                    e("s_nop 0")
                    e(f"v_add_f32 v28, 1.0, v28")
                    e(f"v_rcp_f32 v28, v28")
                    e("s_nop 0")
                    e(f"v_mul_f32 v{v}, v{v}, v28")
                e(f"v_cvt_pk_bf16_f32 v32, v{x}, v{x+1}")
                e(f"v_cvt_pk_bf16_f32 v33, v{x+2}, v{x+3}")
                e(f"s_add_u32 s23, s22, {mt*32*3584}")
                e(f"buffer_store_dwordx2 v[32:33], v13, s[8:11], s23 offen offset:{nt*64+g*16}")
    e("s_branch mid_end")
    UREG = 9088; KB = 2*UREG; KREG = 4224
    e("mid_conv:")
    e(f"s_sub_u32 s3, s2, {N_G1}")
    e("s_load_dwordx2 s[6:7], s[0:1], 64")
    e("v_mov_b32 v8, 0"); e("v_mov_b32 v9, 0"); e("v_mov_b32 v10, 0"); e("v_mov_b32 v11, 0")
    e("v_lshlrev_b32 v1, 4, v0")
    for c in range(2):
        e(f"ds_write_b128 v1, v[8:11] offset:{c*UREG}")
        e("v_cmp_gt_u32 vcc, 24, v0")
        e("s_and_saveexec_b64 s[20:21], vcc")
        e(f"ds_write_b128 v1, v[8:11] offset:{c*UREG + 4096}")
        e("s_mov_b64 exec, s[20:21]")
        e("v_cmp_gt_u32 vcc, 8, v0")
        e("s_and_saveexec_b64 s[20:21], vcc")
        e(f"ds_write_b128 v1, v[8:11] offset:{KB + c*KREG + 4096}")
        e("s_mov_b64 exec, s[20:21]")
    e("s_lshl_b32 s12, s3, 5")
    e(f"s_add_u32 s12, s12, {G.XNT_OFF}")
    e("v_lshlrev_b32 v2, 13, v0")
    e("buffer_load_dwordx4 v[12:15], v2, s[8:11], s12 offen")
    e("buffer_load_dwordx4 v[16:19], v2, s[8:11], s12 offen offset:16")
    e("v_lshrrev_b32 v3, 3, v0")
    e("v_add_u32 v3, 31, v3")
    e("v_mul_u32_u24 v3, 144, v3")
    e("v_and_b32 v4, 7, v0")
    e("v_lshl_add_u32 v3, v4, 4, v3")
    e("s_waitcnt vmcnt(0)")
    e("ds_write_b128 v3, v[12:15]")
    e(f"ds_write_b128 v3, v[16:19] offset:{UREG}")
    e(f"s_mul_i32 s13, s3, {2*G.KC_PITCH}")
    e(f"s_add_u32 s13, s13, {G.KC_OFF}")
    for i in range(8):
        e(f"v_add_u32 v5, {256*i}, v0")
        e("v_cvt_f32_u32 v6, v5")
        e("v_cvt_pk_bf16_f32 v6, v6, v6")
        e("v_and_b32 v6, 0xffff, v6")
        e("v_subrev_u32 v6, 17024, v6")
        e("v_cmp_gt_u32 vcc, 256, v5")
        e("s_nop 1")
        e("v_cndmask_b32 v6, v6, v5, vcc")
        e("v_lshlrev_b32 v6, 2, v6")
        e(f"buffer_load_dword v{20+2*i}, v6, s[8:11], s13 offen")
        e(f"buffer_load_dword v{21+2*i}, v6, s[8:11], s13 offen offset:{G.KC_PITCH}")
    e("s_waitcnt vmcnt(0)")
    e("v_lshlrev_b32 v7, 1, v0")
    e("v_sub_u32 v7, 4094, v7")
    for i in range(8):
        e(f"v_cvt_pk_bf16_f32 v5, v{20+2*i}, v{21+2*i}")
        e(f"ds_write_b16 v7, v5 offset:{KB + 4096 - 512*i - 4096 + 0}" if False else f"v_subrev_u32 v6, {512*i}, v7")
        e(f"ds_write_b16 v6, v5 offset:{KB}")
        e(f"ds_write_b16_d16_hi v6, v5 offset:{KB+KREG}")
    e("s_waitcnt lgkmcnt(0)")
    e("s_barrier")
    e("v_lshrrev_b32 v5, 6, v0")
    e("v_lshrrev_b32 v8, 1, v5")
    e("v_and_b32 v9, 1, v5")
    e("v_and_b32 v6, 31, v0")
    e("v_bfe_u32 v7, v0, 5, 1")
    e("v_lshlrev_b32 v10, 5, v9")
    e("v_add_u32 v10, v10, v6")
    e("v_sub_u32 v10, 63, v10")
    e("v_lshl_add_u32 v10, v7, 3, v10")
    e("v_lshlrev_b32 v10, 1, v10")
    e(f"v_mul_u32_u24 v12, {KREG}, v8")
    e("v_add_u32 v10, v10, v12")
    e(f"v_add_u32 v10, {KB}, v10")
    e("v_mul_u32_u24 v11, 144, v6")
    e("v_lshl_add_u32 v11, v7, 4, v11")
    e(f"v_mul_u32_u24 v12, {UREG}, v8")
    e("v_add_u32 v11, v11, v12")
    ACC = 64
    for i in range(16):
        e(f"v_mov_b32 v{ACC+i}, 0")
    steps = [(m, j0) for m in range(32) for j0 in (0, 16, 32, 48)]
    def rd(k, slot):
        m, j0 = steps[k]
        e(f"ds_read_b128 {vr(16+8*slot,4)}, v10 offset:{2*(64*(31-m)+j0)}")
        e(f"ds_read_b128 {vr(20+8*slot,4)}, v11 offset:{(31-m)*144 + 2*j0}")
    NS = 4
    for k in range(NS-1): rd(k, k)
    for k in range(len(steps)):
        if k + NS - 1 < len(steps):
            rd(k+NS-1, (k+NS-1) % NS)
            e(f"s_waitcnt lgkmcnt({2*(NS-1)})")
        else:
            e(f"s_waitcnt lgkmcnt({2*(len(steps)-1-k)})")
        s = k % NS
        e(f"v_mfma_f32_32x32x16_bf16 {vr(ACC,16)}, {vr(16+8*s,4)}, {vr(20+8*s,4)}, {vr(ACC,16)}")
    e("s_nop 15")
    e("s_nop 7")
    e("s_waitcnt lgkmcnt(0)")
    srd(16, 6, 1024)
    e("s_lshl_b32 s20, s3, 2")
    e("v_lshlrev_b32 v13, 1, v8")
    e("v_add_u32 v13, s20, v13")
    e("buffer_load_ushort v13, v13, s[16:19], 0 offen")
    e("v_mul_u32_u24 v14, 144, v6")
    e("v_add_u32 v14, v14, v12")
    e("v_lshl_add_u32 v14, v9, 6, v14")
    e("v_lshl_add_u32 v14, v7, 3, v14")
    e("v_lshlrev_b32 v15, 7, v6")
    e("v_lshl_add_u32 v15, v9, 6, v15")
    e("v_lshl_add_u32 v15, v7, 3, v15")
    e("v_lshl_add_u32 v15, v8, 12, v15")
    e("s_lshl_b32 s21, s3, 13")
    e(f"s_add_u32 s21, s21, {G.YA_OFF}")
    e("s_waitcnt vmcnt(0)")
    e("v_lshlrev_b32 v13, 16, v13")
    for g in range(4):
        e(f"ds_read_b64 v[16:17], v14 offset:{31*144 + 16*g}")
        e("s_waitcnt lgkmcnt(0)")
        x = 24
        e("v_lshlrev_b32 v20, 16, v16"); e("v_and_b32 v21, 0xffff0000, v16")
        e("v_lshlrev_b32 v22, 16, v17"); e("v_and_b32 v23, 0xffff0000, v17")
        for j in range(4):
            e(f"v_mul_f32 v{20+j}, v{20+j}, v13")
            e(f"v_mov_b32 v{x+j}, v{ACC+4*g+j}")
        G.rbf_inplace(20, 21, 30); G.rbf_inplace(22, 23, 30)
        G.rbf_inplace(x, x+1, 30); G.rbf_inplace(x+2, x+3, 30)
        for j in range(4):
            e(f"v_add_f32 v{x+j}, v{x+j}, v{20+j}")
        e(f"v_cvt_pk_bf16_f32 v32, v{x}, v{x+1}")
        e(f"v_cvt_pk_bf16_f32 v33, v{x+2}, v{x+3}")
        e(f"buffer_store_dwordx2 v[32:33], v15, s[8:11], s21 offen offset:{16*g}")
    e("mid_end:")
    e("s_endpgm")

    e(".p2align 8")
    e("fin_kernel:")
    e(f"s_cmp_ge_u32 s2, {N_FIN}")
    e("s_cbranch_scc1 fin_end")
    e("s_load_dwordx2 s[4:5], s[0:1], 128")
    e("s_waitcnt lgkmcnt(0)")
    srd(8, 4, G.WS_REC)
    e("s_lshr_b32 s12, s2, 3")
    e("s_and_b32 s13, s2, 7")
    e("s_mul_i32 s14, s12, 229376")
    e(f"s_add_u32 s14, s14, {G.H_OFF}")
    e("s_mul_i32 s15, s13, 229376")
    e(f"s_add_u32 s15, s15, {G.W2T_OFF}")
    e("v_lshrrev_b32 v1, 4, v0")
    e("v_and_b32 v2, 15, v0")
    e("s_mov_b32 s21, 3584")
    e("v_mul_lo_u32 v3, v1, s21")
    e("v_lshl_add_u32 v3, v2, 4, v3")
    e("v_mul_u32_u24 v4, 272, v1")
    e("v_lshl_add_u32 v4, v2, 4, v4")
    e("v_lshrrev_b32 v5, 6, v0")
    e("v_and_b32 v6, 31, v0")
    e("v_bfe_u32 v7, v0, 5, 1")
    e("v_lshrrev_b32 v8, 1, v5")
    e("v_and_b32 v9, 1, v5")
    e("v_lshl_add_u32 v10, v8, 5, v6")
    e("v_mul_u32_u24 v10, 272, v10")
    e("v_lshl_add_u32 v10, v7, 4, v10")
    e("v_lshl_add_u32 v11, v9, 5, v6")
    e("v_mul_u32_u24 v11, 272, v11")
    e("v_lshl_add_u32 v11, v7, 4, v11")
    e("v_add_u32 v11, 17408, v11")
    ACC = 64
    for i in range(16):
        e(f"v_mov_b32 v{ACC+i}, 0")
    ST = 16; FR = 48
    def floads(c):
        for i in range(4):
            e(f"s_add_u32 s16, s14, {c*256 + i*16*3584}")
            e(f"buffer_load_dwordx4 {vr(ST+4*i,4)}, v3, s[8:11], s16 offen")
        for i in range(4):
            e(f"s_add_u32 s16, s15, {c*256 + i*16*3584}")
            e(f"buffer_load_dwordx4 {vr(ST+16+4*i,4)}, v3, s[8:11], s16 offen")
    def fwrites(b):
        for i in range(4):
            e(f"ds_write_b128 v4, {vr(ST+4*i,4)} offset:{b*34816 + i*16*272}")
        for i in range(4):
            e(f"ds_write_b128 v4, {vr(ST+16+4*i,4)} offset:{b*34816 + 17408 + i*16*272}")
    floads(0)
    e("s_waitcnt vmcnt(0)")
    fwrites(0)
    e("s_waitcnt lgkmcnt(0)")
    e("s_barrier")
    for c in range(14):
        if c < 13: floads(c+1)
        b = c & 1
        for ks in range(8):
            o = b*34816 + ks*32
            s = ks & 1
            e(f"ds_read_b128 {vr(FR+8*s,4)}, v10 offset:{o}")
            e(f"ds_read_b128 {vr(FR+8*s+4,4)}, v11 offset:{o}")
            e("s_waitcnt lgkmcnt(0)")
            e(f"v_mfma_f32_32x32x16_bf16 {vr(ACC,16)}, {vr(FR+8*s,4)}, {vr(FR+8*s+4,4)}, {vr(ACC,16)}")
        if c < 13:
            e("s_waitcnt vmcnt(0)")
            fwrites(b ^ 1)
            e("s_waitcnt lgkmcnt(0)")
            e("s_barrier")
    e("s_nop 15")
    e("s_nop 7")
    e("s_load_dwordx2 s[6:7], s[0:1], 104")
    e("s_load_dwordx2 s[24:25], s[0:1], 0")
    e("s_load_dwordx2 s[26:27], s[0:1], 112")
    e("s_waitcnt lgkmcnt(0)")
    srd(16, 6, 1024)
    srd(28, 24, 2048*1024)
    srd(32, 26, 2048*1024)
    e("s_lshl_b32 s20, s13, 6")
    e("v_lshl_add_u32 v12, v9, 5, v6")
    e("v_add_u32 v12, s20, v12")
    e("v_lshlrev_b32 v13, 1, v12")
    e("buffer_load_ushort v14, v13, s[16:19], 0 offen")
    e("s_lshl_b32 s20, s12, 6")
    e("v_lshlrev_b32 v15, 5, v8")
    e("v_lshl_add_u32 v15, v7, 2, v15")
    e("v_add_u32 v15, s20, v15")
    e("v_lshlrev_b32 v16, 12, v12")
    e("v_lshl_add_u32 v16, v15, 1, v16")
    e("v_lshlrev_b32 v17, 10, v15")
    e("v_add_u32 v17, v17, v13")
    e(f"s_mov_b32 s22, {G.YA_OFF}")
    e("s_waitcnt vmcnt(0)")
    e("v_lshlrev_b32 v14, 16, v14")
    for g in range(4):
        e(f"buffer_load_dwordx2 v[18:19], v16, s[8:11], s22 offen offset:{16*g}")
        for j in range(4):
            e(f"buffer_load_ushort v{20+j}, v17, s[28:31], 0 offen offset:{(8*g+j)*1024}" if (8*g+j)*1024 < 4096 else f"s_nop 0")
        if (8*g)*1024 >= 4096:
            e(f"s_mov_b32 s23, {8*g*1024}")
            for j in range(4):
                e(f"buffer_load_ushort v{20+j}, v17, s[28:31], s23 offen offset:{j*1024}")
        else:
            e(f"s_mov_b32 s23, 0")
        e("s_waitcnt vmcnt(0)")
        x = 24
        for j in range(4):
            e(f"v_mov_b32 v{x+j}, v{ACC+4*g+j}")
            e(f"v_lshlrev_b32 v{20+j}, 16, v{20+j}")
        G.rbf_inplace(x, x+1, 30); G.rbf_inplace(x+2, x+3, 30)
        for j in range(4):
            e(f"v_add_f32 v{x+j}, v{x+j}, v14")
        G.rbf_inplace(x, x+1, 30); G.rbf_inplace(x+2, x+3, 30)
        e("v_lshlrev_b32 v32, 16, v18"); e("v_add_f32 v20, v20, v32")
        e("v_and_b32 v32, 0xffff0000, v18"); e("v_add_f32 v21, v21, v32")
        e("v_lshlrev_b32 v32, 16, v19"); e("v_add_f32 v22, v22, v32")
        e("v_and_b32 v32, 0xffff0000, v19"); e("v_add_f32 v23, v23, v32")
        G.rbf_inplace(20, 21, 30); G.rbf_inplace(22, 23, 30)
        for j in range(4):
            e(f"v_add_f32 v{x+j}, v{x+j}, v{20+j}")
        e(f"v_cvt_pk_bf16_f32 v32, v{x}, v{x+1}")
        e(f"v_cvt_pk_bf16_f32 v33, v{x+2}, v{x+3}")
        off = (lambda j: (8*g+j)*1024 if 8*g*1024 < 4096 else j*1024)
        e(f"buffer_store_short v32, v17, s[32:35], s23 offen offset:{off(0)}")
        e(f"buffer_store_short_d16_hi v32, v17, s[32:35], s23 offen offset:{off(1)}")
        e(f"buffer_store_short v33, v17, s[32:35], s23 offen offset:{off(2)}")
        e(f"buffer_store_short_d16_hi v33, v17, s[32:35], s23 offen offset:{off(3)}")
    e("fin_end:")
    e("s_endpgm")
```

```python
import sys
NAME = "parallel_sum__ssm_conv_s4__mixer_channel_mlp__prompt"

Y2_OFF = 0
XNT_OFF = 2 << 20
W1T_OFF = 4 << 20
W2T_OFF = 6 << 20
KC_OFF = 8 << 20
KC_PITCH = 672 * 4
H_OFF = 10 << 20
YA_OFF = 18 << 20
WS_REC = 32 << 20

L = []
def e(s=""):
    L.append(s)

def vr(a, n):
    return f"v[{a}:{a+n-1}]"
def sr(a, n):
    return f"s[{a}:{a+n-1}]"

def srd(sd, sbase, nbytes):
    e(f"s_mov_b32 s{sd}, s{sbase}")
    e(f"s_and_b32 s{sd+1}, s{sbase+1}, 0xffff")
    e(f"s_mov_b32 s{sd+2}, {nbytes}")
    e(f"s_mov_b32 s{sd+3}, 0x00020000")

def round_pair(dst_pk, a, b):
    e(f"v_cvt_pk_bf16_f32 v{dst_pk}, v{a}, v{b}")

def rbf_inplace(a, b, tmp):
    e(f"v_cvt_pk_bf16_f32 v{tmp}, v{a}, v{b}")
    e(f"v_lshlrev_b32 v{a}, 16, v{tmp}")
    e(f"v_and_b32 v{b}, 0xffff0000, v{tmp}")

def reduce32(v, t, t2):
    for r in (8, 4, 2, 1):
        e("s_nop 1")
        e(f"v_add_f32_dpp v{t}, v{v}, v{v} row_ror:{r} row_mask:0xf bank_mask:0xf")
        v, t = t, v
    e("s_nop 1")
    e(f"ds_swizzle_b32 v{t2}, v{v} offset:0x401F")
    e("s_waitcnt lgkmcnt(0)")
    e(f"v_add_f32 v{v}, v{v}, v{t2}")
    return v

LOG2E = 0x3fb8aa3b
INV2PI = 0x3e22f983

N_LN, N_KG, N_TR = 256, 512, 448
N_PREP = N_LN + N_KG + N_TR

def layernorm_regs(X, tmpA, tmpB, tmpC):
    s = tmpA
    e(f"v_add_f32 v{s}, v{X}, v{X+1}")
    for i in range(2, 16):
        e(f"v_add_f32 v{s}, v{s}, v{X+i}")
    s = reduce32(s, tmpB, tmpC)
    mean = s
    e(f"v_mul_f32 v{mean}, 0x3b000000, v{mean}")
    q = tmpA if mean != tmpA else tmpB
    other = [t for t in (tmpA, tmpB, tmpC) if t not in (mean, q)][0]
    e(f"v_sub_f32 v{q}, v{X}, v{mean}")
    e(f"v_mul_f32 v{q}, v{q}, v{q}")
    for i in range(1, 16):
        e(f"v_sub_f32 v{other}, v{X+i}, v{mean}")
        e(f"v_fmac_f32 v{q}, v{other}, v{other}")
    T3 = 62; T4 = 63
    q = reduce32(q, T3, T4)
    e(f"v_mul_f32 v{q}, 0x3b000000, v{q}")
    rbf_inplace(mean, q, T4)
    e(f"v_add_f32 v{q}, 0x3727c5ac, v{q}")
    e(f"v_cvt_pk_bf16_f32 v{T4}, v{q}, v{q}")
    e(f"v_lshlrev_b32 v{q}, 16, v{T4}")
    e(f"v_sqrt_f32 v{q}, v{q}")
    e("s_nop 0")
    e(f"v_cvt_pk_bf16_f32 v{T4}, v{q}, v{q}")
    e(f"v_lshlrev_b32 v{q}, 16, v{T4}")
    e(f"v_rcp_f32 v{q}, v{q}")
    e("s_nop 0")
    for i in range(0, 16, 2):
        e(f"v_sub_f32 v{X+i}, v{X+i}, v{mean}")
        e(f"v_sub_f32 v{X+i+1}, v{X+i+1}, v{mean}")
        rbf_inplace(X+i, X+i+1, T4)
        e(f"v_mul_f32 v{X+i}, v{X+i}, v{q}")
        e(f"v_mul_f32 v{X+i+1}, v{X+i+1}, v{q}")
        rbf_inplace(X+i, X+i+1, T4)

def prep_kernel():
    e(".p2align 8")
    e("prep_kernel:")
    e(f"s_cmp_ge_u32 s2, {N_PREP}")
    e("s_cbranch_scc1 prep_end")
    e("s_load_dwordx2 s[4:5], s[0:1], 128")
    e("s_waitcnt lgkmcnt(0)")
    srd(8, 4, WS_REC)
    e(f"s_cmp_ge_u32 s2, {N_LN}")
    e("s_cbranch_scc1 prep_not_ln")
    e("s_load_dwordx2 s[6:7], s[0:1], 0")
    e("s_waitcnt lgkmcnt(0)")
    srd(12, 6, 2048*512*2)
    e("v_lshrrev_b32 v1, 5, v0")
    e("v_and_b32 v2, 31, v0")
    e("v_lshlrev_b32 v3, 10, v1")
    e("v_lshl_add_u32 v3, v2, 5, v3")
    e("s_lshl_b32 s3, s2, 13")
    e("v_add_u32 v4, s3, v3")
    e("buffer_load_dwordx4 v[8:11], v4, s[12:15], 0 offen")
    e("buffer_load_dwordx4 v[12:15], v4, s[12:15], 0 offen offset:16")
    e("s_waitcnt vmcnt(0)")
    X = 16
    for i in range(8):
        e(f"v_lshlrev_b32 v{X+2*i}, 16, v{8+i}")
        e(f"v_and_b32 v{X+2*i+1}, 0xffff0000, v{8+i}")
    layernorm_regs(X, 40, 41, 42)
    for i in range(8):
        e(f"v_cvt_pk_bf16_f32 v{8+i}, v{X+2*i}, v{X+2*i+1}")
    e("ds_write_b128 v3, v[8:11]")
    e("ds_write_b128 v3, v[12:15] offset:16")
    layernorm_regs(X, 40, 41, 42)
    for i in range(8):
        e(f"v_cvt_pk_bf16_f32 v{8+i}, v{X+2*i}, v{X+2*i+1}")
    e(f"buffer_store_dwordx4 v[8:11], v4, s[8:11], 0 offen")
    e(f"buffer_store_dwordx4 v[12:15], v4, s[8:11], 0 offen offset:16")
    e("s_waitcnt lgkmcnt(0)")
    e("s_barrier")
    for half in range(2):
        e(f"v_lshlrev_b32 v5, 1, v0")
        for r in range(8):
            e(f"ds_read_u16 v{16+r}, v5 offset:{r*1024 + half*512}")
        e("s_waitcnt lgkmcnt(0)")
        for r in range(4):
            e(f"v_lshl_or_b32 v{24+r}, v{16+2*r+1}, 16, v{16+2*r}")
        e(f"v_lshlrev_b32 v6, 4, v0")
        e(f"s_add_u32 s16, s3, {XNT_OFF + half*4096}")
        e(f"buffer_store_dwordx4 v[24:27], v6, s[8:11], s16 offen")
        e("s_nop 1")
    e("s_branch prep_end")
    e("prep_not_ln:")
    e(f"s_cmp_ge_u32 s2, {N_LN + N_KG}")
    e("s_cbranch_scc1 prep_trans")
    kgen()
    e("s_branch prep_end")
    e("prep_trans:")
    trans()
    e("prep_end:")
    e("s_endpgm")

def kgen():
    e(f"s_sub_u32 s3, s2, {N_LN}")
    e("s_load_dwordx8 s[16:23], s[0:1], 8")
    e("s_load_dwordx4 s[24:27], s[0:1], 40")
    e("s_load_dwordx2 s[28:29], s[0:1], 56")
    e("v_lshrrev_b32 v1, 6, v0")
    e("v_and_b32 v2, 15, v0")
    e("v_bfe_u32 v3, v0, 4, 2")
    e("s_lshl_b32 s30, s3, 8")
    e("v_lshlrev_b32 v4, 6, v3")
    e("v_add_u32 v4, s30, v4")
    e("s_waitcnt lgkmcnt(0)")
    srd(32, 28, 1024)
    e("s_lshl_b32 s31, s3, 1")
    e("v_mov_b32 v5, s31")
    e("buffer_load_ushort v5, v5, s[32:35], 0 offen")
    P = 64
    for ai in range(6):
        srd(32, 16 + 2*ai, 512*128*2)
        for c in range(4):
            e(f"buffer_load_dwordx4 {vr(P+16*ai+4*c,4)}, v4, s[32:35], 0 offen offset:{16*c}")
        e("s_waitcnt vmcnt(0)")
    e("v_lshlrev_b32 v5, 16, v5")
    e(f"v_mul_f32 v5, {LOG2E}, v5")
    e("v_exp_f32 v5, v5")
    e("s_nop 0")
    e("v_cvt_pk_bf16_f32 v5, v5, v5")
    e("v_lshlrev_b32 v5, 16, v5")
    e("v_cvt_f32_u32 v6, v2")
    e("v_lshlrev_b32 v7, v1, 1")
    e("v_cvt_f32_u32 v7, v7")
    e("v_mul_f32 v8, v6, v7")
    e("v_mul_f32 v9, 16.0, v8")
    e("v_mul_f32 v10, 0x43000000, v7")
    e("v_cmp_eq_u32 vcc, 0, v1")
    e("s_nop 1")
    e("v_cndmask_b32 v10, v10, 0, vcc")
    e("v_add_f32 v9, v9, v10")
    ACC = 12
    e("v_mov_b32 v12, 0"); e("v_mov_b32 v13, 0"); e("v_mov_b32 v14, 0"); e("v_mov_b32 v15, 0")
    AF, BF = 16, 20
    for q in range(8):
        for ee in range(4):
            n = 4*q + ee
            def par(ai):
                reg = P + 16*ai + n//2
                return reg, (n & 1)
            t = 24
            def unpack(dst, ai):
                reg, hi = par(ai)
                if hi: e(f"v_and_b32 v{dst}, 0xffff0000, v{reg}")
                else:  e(f"v_lshlrev_b32 v{dst}, 16, v{reg}")
            a2, b2, dBr, dBi, Cr, Ci, Wr, Wi = t, t+1, t+2, t+3, t+4, t+5, t+6, t+7
            for dst, ai in ((a2,0),(b2,1),(dBr,2),(dBi,3),(Cr,4),(Ci,5)):
                unpack(dst, ai)
            e(f"v_mul_f32 v{a2}, v{a2}, v5")
            e(f"v_mul_f32 v{b2}, v{b2}, v5")
            e(f"v_mul_f32 v{dBr}, v{dBr}, v5")
            e(f"v_mul_f32 v{dBi}, v{dBi}, v5")
            e(f"v_mul_f32 v{a2}, {LOG2E}, v{a2}")
            e(f"v_mul_f32 v{b2}, {INV2PI}, v{b2}")
            e(f"v_mul_f32 v{Wr}, v{Cr}, v{dBr}")
            e(f"v_fma_f32 v{Wr}, -v{Ci}, v{dBi}, v{Wr}")
            e(f"v_mul_f32 v{Wi}, v{Cr}, v{dBi}")
            e(f"v_fma_f32 v{Wi}, v{Ci}, v{dBr}, v{Wi}")
            def cexp(R, outr, outi, tm):
                e(f"v_mul_f32 v{tm}, v{a2}, v{R}")
                e(f"v_exp_f32 v{tm}, v{tm}")
                e(f"v_mul_f32 v{tm+1}, v{b2}, v{R}")
                e(f"v_fract_f32 v{tm+1}, v{tm+1}")
                e(f"v_cos_f32 v{outr}, v{tm+1}")
                e(f"v_sin_f32 v{outi}, v{tm+1}")
                e("s_nop 0")
                e(f"v_mul_f32 v{outr}, v{outr}, v{tm}")
                e(f"v_mul_f32 v{outi}, v{outi}, v{tm}")
            cexp(8, 32, 33, 34)
            e(f"v_cvt_pk_bf16_f32 v{BF+ee}, v32, v33")
            cexp(9, 32, 33, 34)
            e(f"v_mul_f32 v36, v{Wr}, v32")
            e(f"v_fma_f32 v36, -v{Wi}, v33, v36")
            e(f"v_mul_f32 v37, v{Wr}, v33")
            e(f"v_fma_f32 v37, v{Wi}, v32, v37")
            e(f"v_cvt_pk_bf16_f32 v{AF+ee}, v36, -v37")
        e("s_nop 1")
        e(f"v_mfma_f32_16x16x32_bf16 v[12:15], {vr(AF,4)}, {vr(BF,4)}, v[12:15]")
        e("s_nop 7")
    e("s_nop 7")
    e("v_lshlrev_b32 v16, 7, v1")
    e("v_add_u32 v16, 128, v16")
    e("v_cmp_eq_u32 vcc, 0, v1")
    e("s_nop 1")
    e("v_cndmask_b32 v16, v16, 0, vcc")
    e("v_lshl_add_u32 v16, v3, 6, v16")
    e("v_add_u32 v16, v16, v2")
    e("v_lshlrev_b32 v16, 2, v16")
    e(f"s_mul_i32 s30, s3, {KC_PITCH}")
    e(f"s_add_u32 s30, s30, {KC_OFF}")
    e("v_cmp_gt_u32 vcc, 2, v3")
    e("v_cmp_eq_u32 s[36:37], 0, v1")
    e("s_or_b64 s[36:37], s[36:37], vcc")
    e("v_cmp_eq_u32 vcc, 3, v1")
    e("v_cmp_eq_u32 s[38:39], 2, v3")
    e("s_and_b64 s[38:39], s[38:39], vcc")
    e("s_or_b64 s[38:39], s[38:39], s[36:37]")
    e("s_mov_b64 exec, s[38:39]")
    e("buffer_store_dword v12, v16, s[8:11], s30 offen")
    e("s_mov_b64 exec, s[36:37]")
    e("buffer_store_dword v13, v16, s[8:11], s30 offen offset:64")
    e("buffer_store_dword v14, v16, s[8:11], s30 offen offset:128")
    e("buffer_store_dword v15, v16, s[8:11], s30 offen offset:192")
    e("s_mov_b64 exec, -1")

def trans():
    e(f"s_sub_u32 s3, s2, {N_LN + N_KG}")
    e("s_load_dwordx2 s[6:7], s[0:1], 80")
    e("s_load_dwordx2 s[16:17], s[0:1], 96")
    e("s_waitcnt lgkmcnt(0)")
    e("s_cmp_ge_u32 s3, 224")
    e("s_cbranch_scc1 tr_w2")
    e("s_mul_i32 s18, s3, 9363")
    e("s_lshr_b32 s18, s18, 18")
    e("s_mul_i32 s19, s18, 28")
    e("s_sub_u32 s19, s3, s19")
    e("s_mov_b32 s20, 3584")
    e("s_mov_b32 s21, 1024")
    e(f"s_mov_b32 s22, {W1T_OFF}")
    srd(12, 6, 512*1792*2)
    e("s_branch tr_go")
    e("tr_w2:")
    e("s_sub_u32 s3, s3, 224")
    e("s_lshr_b32 s18, s3, 3")
    e("s_and_b32 s19, s3, 7")
    e("s_mov_b32 s20, 1024")
    e("s_mov_b32 s21, 3584")
    e(f"s_mov_b32 s22, {W2T_OFF}")
    srd(12, 16, 512*1792*2)
    e("tr_go:")
    e("v_lshrrev_b32 v1, 3, v0")
    e("v_and_b32 v2, 7, v0")
    e("s_lshl_b32 s23, s18, 6")
    e("s_mul_i32 s23, s23, s20")
    e("s_lshl_b32 s24, s19, 7")
    e("s_add_u32 s23, s23, s24")
    e("v_mul_lo_u32 v3, v1, s20")
    e("v_lshl_add_u32 v3, v2, 4, v3")
    e("v_add_u32 v3, s23, v3")
    e("s_lshl_b32 s25, s20, 5")
    e("v_add_u32 v4, s25, v3")
    e("buffer_load_dwordx4 v[8:11], v3, s[12:15], 0 offen")
    e("buffer_load_dwordx4 v[12:15], v4, s[12:15], 0 offen")
    e("v_mul_u32_u24 v5, 136, v1")
    e("v_lshl_add_u32 v5, v2, 4, v5")
    e("s_waitcnt vmcnt(0)")
    e("ds_write_b64 v5, v[8:9]")
    e("ds_write_b64 v5, v[10:11] offset:8")
    e(f"ds_write_b64 v5, v[12:13] offset:{32*136}")
    e(f"ds_write_b64 v5, v[14:15] offset:{32*136+8}")
    e("s_waitcnt lgkmcnt(0)")
    e("s_barrier")
    e("s_lshl_b32 s23, s19, 6")
    e("s_mul_i32 s23, s23, s21")
    e("s_lshl_b32 s24, s18, 7")
    e("s_add_u32 s23, s23, s24")
    e("s_add_u32 s23, s23, s22")
    e("s_lshl_b32 s26, s21, 5")
    for i in range(2):
        e(f"v_mul_u32_u24 v5, {8*136}, v2")
        e(f"v_lshl_add_u32 v5, v1, 1, v5")
        for r in range(8):
            e(f"ds_read_u16 v{16+r}, v5 offset:{r*136 + i*64}")
        e("s_waitcnt lgkmcnt(0)")
        for r in range(4):
            e(f"v_lshl_or_b32 v{24+r}, v{16+2*r+1}, 16, v{16+2*r}")
        e("v_mul_lo_u32 v6, v1, s21")
        e("v_lshl_add_u32 v6, v2, 4, v6")
        if i: e("v_add_u32 v6, s26, v6")
        e("buffer_store_dwordx4 v[24:27], v6, s[8:11], s23 offen")
        e("s_nop 1")

def kd(name, vgpr, lds_static=0):
    e(f".amdhsa_kernel {name}")
    e(f"  .amdhsa_next_free_vgpr {vgpr}")
    e("  .amdhsa_next_free_sgpr 102")
    e(f"  .amdhsa_accum_offset {vgpr}")
    e("  .amdhsa_group_segment_fixed_size 0")
    e("  .amdhsa_kernarg_size 136")
    e("  .amdhsa_user_sgpr_count 2")
    e("  .amdhsa_user_sgpr_kernarg_segment_ptr 1")
    e("  .amdhsa_system_sgpr_workgroup_id_x 1")
    e(".end_amdhsa_kernel")

def main():
    import gen2
    e(f"; @launch kernel=prep_kernel grid=({N_PREP},1,1) block=(256,1,1) lds=8704")
    e(f"; @launch kernel=mid_kernel grid=({gen2.N_MID},1,1) block=(256,1,1) lds={gen2.MID_LDS}")
    e(f"; @launch kernel=fin_kernel grid=({gen2.N_FIN},1,1) block=(256,1,1) lds={gen2.FIN_LDS}")
    e('.amdgcn_target "amdgcn-amd-amdhsa--gfx950"')
    e(".text")
    for k in ("prep_kernel", "mid_kernel", "fin_kernel"):
        e(f".globl {k}")
        e(f".type {k},@function")
    prep_kernel()
    gen2.emit(sys.modules[__name__])
    e('.section .rodata,"a"')
    e(".p2align 6")
    kd("prep_kernel", 168)
    e(".p2align 6")
    kd("mid_kernel", gen2.MID_VGPR)
    e(".p2align 6")
    kd("fin_kernel", gen2.FIN_VGPR)
    open(f"cdna_kernels/{NAME}.s", "w").write("\n".join(L) + "\n")

if __name__ == "__main__":
    main()
```

```python
N_G1, N_CV = 224, 256
N_MID = N_G1 + N_CV
MID_LDS = 73728
MID_VGPR = 240
N_FIN = 256
FIN_LDS = 69632
FIN_VGPR = 240

def emit(G):
    e, vr, srd = G.e, G.vr, G.srd
    GELU_C = 0xc0135761
    e(".p2align 8")
    e("mid_kernel:")
    e(f"s_cmp_ge_u32 s2, {N_MID}")
    e("s_cbranch_scc1 mid_end")
    e("s_load_dwordx2 s[4:5], s[0:1], 128")
    e("s_waitcnt lgkmcnt(0)")
    srd(8, 4, G.WS_REC)
    e(f"s_cmp_ge_u32 s2, {N_G1}")
    e("s_cbranch_scc1 mid_conv")
    e("s_mul_i32 s12, s2, 4682")
    e("s_lshr_b32 s12, s12, 16")
    e("s_mul_i32 s13, s12, 14")
    e("s_sub_u32 s13, s2, s13")
    e("s_lshl_b32 s14, s12, 17")
    e(f"s_add_u32 s14, s14, {G.Y2_OFF}")
    e("s_lshl_b32 s15, s13, 17")
    e(f"s_add_u32 s15, s15, {G.W1T_OFF}")
    e("v_lshrrev_b32 v1, 3, v0")
    e("v_and_b32 v2, 7, v0")
    e("v_lshlrev_b32 v3, 10, v1")
    e("v_lshl_add_u32 v3, v2, 4, v3")
    e("v_mul_u32_u24 v4, 144, v1")
    e("v_lshl_add_u32 v4, v2, 4, v4")
    e("v_add_u32 v14, 18432, v4")
    e("v_lshrrev_b32 v5, 6, v0")
    e("v_and_b32 v6, 31, v0")
    e("v_bfe_u32 v7, v0, 5, 1")
    e("v_lshrrev_b32 v8, 1, v5")
    e("v_and_b32 v9, 1, v5")
    e("v_lshl_add_u32 v10, v8, 6, v6")
    e("v_mul_u32_u24 v10, 144, v10")
    e("v_lshl_add_u32 v10, v7, 4, v10")
    e("v_lshl_add_u32 v11, v9, 6, v6")
    e("v_mul_u32_u24 v11, 144, v11")
    e("v_lshl_add_u32 v11, v7, 4, v11")
    e("v_add_u32 v11, 18432, v11")
    ACC = 64
    for i in range(64):
        e(f"v_mov_b32 v{ACC+i}, 0")
    ST = 16
    FR = 48
    def loads(c):
        ST = 144 + 32*(c % 3)
        for i in range(4):
            e(f"s_add_u32 s16, s14, {c*128 + i*32768}")
            e(f"buffer_load_dwordx4 {vr(ST+4*i,4)}, v3, s[8:11], s16 offen")
        for i in range(4):
            e(f"s_add_u32 s16, s15, {c*128 + i*32768}")
            e(f"buffer_load_dwordx4 {vr(ST+16+4*i,4)}, v3, s[8:11], s16 offen")
    def writes(b, c):
        ST = 144 + 32*(c % 3)
        for i in range(4):
            e(f"ds_write_b128 v4, {vr(ST+4*i,4)} offset:{b*36864 + i*32*144}")
        for i in range(4):
            e(f"ds_write_b128 v14, {vr(ST+16+4*i,4)} offset:{b*36864 + i*32*144}")
    loads(0); loads(1); loads(2)
    e("s_waitcnt vmcnt(16)")
    writes(0, 0)
    e("s_waitcnt lgkmcnt(0)")
    e("s_barrier")
    for c in range(8):
        b = c & 1
        def frd(ks):
            o = b*36864 + ks*32; F = FR + 128*(ks & 1) if False else (FR if (ks & 1) == 0 else 128)
            e(f"ds_read_b128 {vr(F,4)}, v10 offset:{o}")
            e(f"ds_read_b128 {vr(F+4,4)}, v10 offset:{o+32*144}")
            e(f"ds_read_b128 {vr(F+8,4)}, v11 offset:{o}")
            e(f"ds_read_b128 {vr(F+12,4)}, v11 offset:{o+32*144}")
        frd(0)
        for ks in range(4):
            F = FR if (ks & 1) == 0 else 128
            if ks < 3:
                frd(ks+1)
                e("s_waitcnt lgkmcnt(4)")
            else:
                e("s_waitcnt lgkmcnt(0)")
            for nt in range(2):
                for mt in range(2):
                    a = ACC + 16*(2*nt+mt)
                    e(f"v_mfma_f32_32x32x16_bf16 {vr(a,16)}, {vr(F+8+4*nt,4)}, {vr(F+4*mt,4)}, {vr(a,16)}")
        if c < 7:
            e(f"s_waitcnt vmcnt({8*min(1, 6-c)})")
            writes(b ^ 1, c+1)
            if c + 3 < 8: loads(c+3)
            e("s_waitcnt lgkmcnt(0)")
            e("s_barrier")
    e("s_nop 15")
    e("s_nop 7")
    e("s_load_dwordx2 s[6:7], s[0:1], 88")
    e("s_waitcnt lgkmcnt(0)")
    srd(16, 6, 1792*2)
    e("s_lshl_b32 s20, s13, 8")
    e("v_lshlrev_b32 v12, 7, v9")
    e("v_lshl_add_u32 v12, v7, 3, v12")
    e("v_add_u32 v12, s20, v12")
    e("v_lshl_add_u32 v13, v8, 6, v6")
    e("s_mov_b32 s21, 3584")
    e("v_mul_lo_u32 v13, v13, s21")
    e("v_add_u32 v13, v13, v12")
    e("s_mul_i32 s22, s12, 458752")
    e(f"s_add_u32 s22, s22, {G.H_OFF}")
    for nt in range(2):
        for g in range(4):
            e(f"buffer_load_dwordx2 {vr(16+2*g,2)}, v12, s[16:19], 0 offen offset:{nt*64+g*16}")
        e("s_waitcnt vmcnt(0)")
        for mt in range(2):
            a = ACC + 16*(2*nt+mt)
            for g in range(4):
                x = 24
                for j in range(4):
                    e(f"v_mov_b32 v{x+j}, v{a+4*g+j}")
                G.rbf_inplace(x, x+1, 30); G.rbf_inplace(x+2, x+3, 30)
                e(f"v_lshlrev_b32 v28, 16, v{16+2*g}")
                e(f"v_add_f32 v{x}, v{x}, v28")
                e(f"v_and_b32 v28, 0xffff0000, v{16+2*g}")
                e(f"v_add_f32 v{x+1}, v{x+1}, v28")
                e(f"v_lshlrev_b32 v28, 16, v{17+2*g}")
                e(f"v_add_f32 v{x+2}, v{x+2}, v28")
                e(f"v_and_b32 v28, 0xffff0000, v{17+2*g}")
                e(f"v_add_f32 v{x+3}, v{x+3}, v28")
                G.rbf_inplace(x, x+1, 30); G.rbf_inplace(x+2, x+3, 30)
                for j in range(4):
                    v = x + j
                    e(f"v_mul_f32 v28, v{v}, v{v}")
                    e(f"v_mul_f32 v28, 0x3d372713, v28")
                    e(f"v_fma_f32 v28, v28, v{v}, v{v}")
                    e(f"v_mul_f32 v28, {GELU_C}, v28")
                    e(f"v_exp_f32 v28, v28")
                    e("s_nop 0")
                    e(f"v_add_f32 v28, 1.0, v28")
                    e(f"v_rcp_f32 v28, v28")
                    e("s_nop 0")
                    e(f"v_mul_f32 v{v}, v{v}, v28")
                e(f"v_cvt_pk_bf16_f32 v32, v{x}, v{x+1}")
                e(f"v_cvt_pk_bf16_f32 v33, v{x+2}, v{x+3}")
                e(f"s_add_u32 s23, s22, {mt*32*3584}")
                e(f"buffer_store_dwordx2 v[32:33], v13, s[8:11], s23 offen offset:{nt*64+g*16}")
    e("s_branch mid_end")
    UREG = 9088; KB = 2*UREG; KREG = 4224
    e("mid_conv:")
    e(f"s_sub_u32 s3, s2, {N_G1}")
    e("s_load_dwordx2 s[6:7], s[0:1], 64")
    e("v_mov_b32 v8, 0"); e("v_mov_b32 v9, 0"); e("v_mov_b32 v10, 0"); e("v_mov_b32 v11, 0")
    e("v_lshlrev_b32 v1, 4, v0")
    for c in range(2):
        e(f"ds_write_b128 v1, v[8:11] offset:{c*UREG}")
        e("v_cmp_gt_u32 vcc, 24, v0")
        e("s_and_saveexec_b64 s[20:21], vcc")
        e(f"ds_write_b128 v1, v[8:11] offset:{c*UREG + 4096}")
        e("s_mov_b64 exec, s[20:21]")
        e("v_cmp_gt_u32 vcc, 8, v0")
        e("s_and_saveexec_b64 s[20:21], vcc")
        e(f"ds_write_b128 v1, v[8:11] offset:{KB + c*KREG + 4096}")
        e("s_mov_b64 exec, s[20:21]")
    e("s_lshl_b32 s12, s3, 5")
    e(f"s_add_u32 s12, s12, {G.XNT_OFF}")
    e("v_lshlrev_b32 v2, 13, v0")
    e("buffer_load_dwordx4 v[12:15], v2, s[8:11], s12 offen")
    e("buffer_load_dwordx4 v[16:19], v2, s[8:11], s12 offen offset:16")
    e("v_lshrrev_b32 v3, 3, v0")
    e("v_add_u32 v3, 31, v3")
    e("v_mul_u32_u24 v3, 144, v3")
    e("v_and_b32 v4, 7, v0")
    e("v_lshl_add_u32 v3, v4, 4, v3")
    e("s_waitcnt vmcnt(0)")
    e("ds_write_b128 v3, v[12:15]")
    e(f"ds_write_b128 v3, v[16:19] offset:{UREG}")
    e(f"s_mul_i32 s13, s3, {2*G.KC_PITCH}")
    e(f"s_add_u32 s13, s13, {G.KC_OFF}")
    for i in range(8):
        e(f"v_add_u32 v5, {256*i}, v0")
        e("v_cvt_f32_u32 v6, v5")
        e("v_cvt_pk_bf16_f32 v6, v6, v6")
        e("v_and_b32 v6, 0xffff, v6")
        e("v_subrev_u32 v6, 17024, v6")
        e("v_cmp_gt_u32 vcc, 256, v5")
        e("s_nop 1")
        e("v_cndmask_b32 v6, v6, v5, vcc")
        e("v_lshlrev_b32 v6, 2, v6")
        e(f"buffer_load_dword v{20+2*i}, v6, s[8:11], s13 offen")
        e(f"buffer_load_dword v{21+2*i}, v6, s[8:11], s13 offen offset:{G.KC_PITCH}")
    e("s_waitcnt vmcnt(0)")
    e("v_lshlrev_b32 v7, 1, v0")
    e("v_sub_u32 v7, 4094, v7")
    for i in range(8):
        e(f"v_cvt_pk_bf16_f32 v5, v{20+2*i}, v{21+2*i}")
        e(f"ds_write_b16 v7, v5 offset:{KB + 4096 - 512*i - 4096 + 0}" if False else f"v_subrev_u32 v6, {512*i}, v7")
        e(f"ds_write_b16 v6, v5 offset:{KB}")
        e(f"ds_write_b16_d16_hi v6, v5 offset:{KB+KREG}")
    e("s_waitcnt lgkmcnt(0)")
    e("s_barrier")
    e("v_lshrrev_b32 v5, 6, v0")
    e("v_lshrrev_b32 v8, 1, v5")
    e("v_and_b32 v9, 1, v5")
    e("v_and_b32 v6, 31, v0")
    e("v_bfe_u32 v7, v0, 5, 1")
    e("v_lshlrev_b32 v10, 5, v9")
    e("v_add_u32 v10, v10, v6")
    e("v_sub_u32 v10, 63, v10")
    e("v_lshl_add_u32 v10, v7, 3, v10")
    e("v_lshlrev_b32 v10, 1, v10")
    e(f"v_mul_u32_u24 v12, {KREG}, v8")
    e("v_add_u32 v10, v10, v12")
    e(f"v_add_u32 v10, {KB}, v10")
    e("v_mul_u32_u24 v11, 144, v6")
    e("v_lshl_add_u32 v11, v7, 4, v11")
    e(f"v_mul_u32_u24 v12, {UREG}, v8")
    e("v_add_u32 v11, v11, v12")
    ACC = 64
    for i in range(16):
        e(f"v_mov_b32 v{ACC+i}, 0")
    steps = [(m, j0) for m in range(32) for j0 in (0, 16, 32, 48)]
    def rd(k, slot):
        m, j0 = steps[k]
        e(f"ds_read_b128 {vr(16+8*slot,4)}, v10 offset:{2*(64*(31-m)+j0)}")
        e(f"ds_read_b128 {vr(20+8*slot,4)}, v11 offset:{(31-m)*144 + 2*j0}")
    NS = 4
    for k in range(NS-1): rd(k, k)
    for k in range(len(steps)):
        if k + NS - 1 < len(steps):
            rd(k+NS-1, (k+NS-1) % NS)
            e(f"s_waitcnt lgkmcnt({2*(NS-1)})")
        else:
            e(f"s_waitcnt lgkmcnt({2*(len(steps)-1-k)})")
        s = k % NS
        e(f"v_mfma_f32_32x32x16_bf16 {vr(ACC,16)}, {vr(16+8*s,4)}, {vr(20+8*s,4)}, {vr(ACC,16)}")
    e("s_nop 15")
    e("s_nop 7")
    e("s_waitcnt lgkmcnt(0)")
    srd(16, 6, 1024)
    e("s_lshl_b32 s20, s3, 2")
    e("v_lshlrev_b32 v13, 1, v8")
    e("v_add_u32 v13, s20, v13")
    e("buffer_load_ushort v13, v13, s[16:19], 0 offen")
    e("v_mul_u32_u24 v14, 144, v6")
    e("v_add_u32 v14, v14, v12")
    e("v_lshl_add_u32 v14, v9, 6, v14")
    e("v_lshl_add_u32 v14, v7, 3, v14")
    e("v_lshlrev_b32 v15, 7, v6")
    e("v_lshl_add_u32 v15, v9, 6, v15")
    e("v_lshl_add_u32 v15, v7, 3, v15")
    e("v_lshl_add_u32 v15, v8, 12, v15")
    e("s_lshl_b32 s21, s3, 13")
    e(f"s_add_u32 s21, s21, {G.YA_OFF}")
    e("s_waitcnt vmcnt(0)")
    e("v_lshlrev_b32 v13, 16, v13")
    for g in range(4):
        e(f"ds_read_b64 v[16:17], v14 offset:{31*144 + 16*g}")
        e("s_waitcnt lgkmcnt(0)")
        x = 24
        e("v_lshlrev_b32 v20, 16, v16"); e("v_and_b32 v21, 0xffff0000, v16")
        e("v_lshlrev_b32 v22, 16, v17"); e("v_and_b32 v23, 0xffff0000, v17")
        for j in range(4):
            e(f"v_mul_f32 v{20+j}, v{20+j}, v13")
            e(f"v_mov_b32 v{x+j}, v{ACC+4*g+j}")
        G.rbf_inplace(20, 21, 30); G.rbf_inplace(22, 23, 30)
        G.rbf_inplace(x, x+1, 30); G.rbf_inplace(x+2, x+3, 30)
        for j in range(4):
            e(f"v_add_f32 v{x+j}, v{x+j}, v{20+j}")
        e(f"v_cvt_pk_bf16_f32 v32, v{x}, v{x+1}")
        e(f"v_cvt_pk_bf16_f32 v33, v{x+2}, v{x+3}")
        e(f"buffer_store_dwordx2 v[32:33], v15, s[8:11], s21 offen offset:{16*g}")
    e("mid_end:")
    e("s_endpgm")

    e(".p2align 8")
    e("fin_kernel:")
    e(f"s_cmp_ge_u32 s2, {N_FIN}")
    e("s_cbranch_scc1 fin_end")
    e("s_load_dwordx2 s[4:5], s[0:1], 128")
    e("s_waitcnt lgkmcnt(0)")
    srd(8, 4, G.WS_REC)
    e("s_lshr_b32 s12, s2, 3")
    e("s_and_b32 s13, s2, 7")
    e("s_mul_i32 s14, s12, 229376")
    e(f"s_add_u32 s14, s14, {G.H_OFF}")
    e("s_mul_i32 s15, s13, 229376")
    e(f"s_add_u32 s15, s15, {G.W2T_OFF}")
    e("v_lshrrev_b32 v1, 4, v0")
    e("v_and_b32 v2, 15, v0")
    e("s_mov_b32 s21, 3584")
    e("v_mul_lo_u32 v3, v1, s21")
    e("v_lshl_add_u32 v3, v2, 4, v3")
    e("v_mul_u32_u24 v4, 272, v1")
    e("v_lshl_add_u32 v4, v2, 4, v4")
    e("v_lshrrev_b32 v5, 6, v0")
    e("v_and_b32 v6, 31, v0")
    e("v_bfe_u32 v7, v0, 5, 1")
    e("v_lshrrev_b32 v8, 1, v5")
    e("v_and_b32 v9, 1, v5")
    e("v_lshl_add_u32 v10, v8, 5, v6")
    e("v_mul_u32_u24 v10, 272, v10")
    e("v_lshl_add_u32 v10, v7, 4, v10")
    e("v_lshl_add_u32 v11, v9, 5, v6")
    e("v_mul_u32_u24 v11, 272, v11")
    e("v_lshl_add_u32 v11, v7, 4, v11")
    e("v_add_u32 v11, 17408, v11")
    ACC = 64
    for i in range(16):
        e(f"v_mov_b32 v{ACC+i}, 0")
    ST = 16; FR = 48
    def floads(c):
        ST = 112 + 32*(c % 4)
        for i in range(4):
            e(f"s_add_u32 s16, s14, {c*256 + i*16*3584}")
            e(f"buffer_load_dwordx4 {vr(ST+4*i,4)}, v3, s[8:11], s16 offen")
        for i in range(4):
            e(f"s_add_u32 s16, s15, {c*256 + i*16*3584}")
            e(f"buffer_load_dwordx4 {vr(ST+16+4*i,4)}, v3, s[8:11], s16 offen")
    def fwrites(b, c):
        ST = 112 + 32*(c % 4)
        for i in range(4):
            e(f"ds_write_b128 v4, {vr(ST+4*i,4)} offset:{b*34816 + i*16*272}")
        for i in range(4):
            e(f"ds_write_b128 v4, {vr(ST+16+4*i,4)} offset:{b*34816 + 17408 + i*16*272}")
    floads(0); floads(1); floads(2); floads(3)
    e("s_waitcnt vmcnt(24)")
    fwrites(0, 0)
    e("s_waitcnt lgkmcnt(0)")
    e("s_barrier")
    for c in range(14):
        b = c & 1
        def frd2(ks):
            o = b*34816 + ks*32; sl = ks & 3
            e(f"ds_read_b128 {vr(80+8*sl,4)}, v10 offset:{o}")
            e(f"ds_read_b128 {vr(84+8*sl,4)}, v11 offset:{o}")
        for ks in range(3): frd2(ks)
        for ks in range(8):
            sl = ks & 3
            if ks + 3 < 8:
                frd2(ks+3)
                e("s_waitcnt lgkmcnt(6)")
            else:
                e(f"s_waitcnt lgkmcnt({2*(7-ks)})")
            e(f"v_mfma_f32_32x32x16_bf16 {vr(ACC,16)}, {vr(80+8*sl,4)}, {vr(84+8*sl,4)}, {vr(ACC,16)}")
        if c < 13:
            e(f"s_waitcnt vmcnt({8*min(2, 12-c)})")
            fwrites(b ^ 1, c+1)
            if c + 4 < 14: floads(c+4)
            e("s_waitcnt lgkmcnt(0)")
            e("s_barrier")
    e("s_nop 15")
    e("s_nop 7")
    e("s_load_dwordx2 s[6:7], s[0:1], 104")
    e("s_load_dwordx2 s[24:25], s[0:1], 0")
    e("s_load_dwordx2 s[26:27], s[0:1], 112")
    e("s_waitcnt lgkmcnt(0)")
    srd(16, 6, 1024)
    srd(28, 24, 2048*1024)
    srd(32, 26, 2048*1024)
    e("s_lshl_b32 s20, s13, 6")
    e("v_lshl_add_u32 v12, v9, 5, v6")
    e("v_add_u32 v12, s20, v12")
    e("v_lshlrev_b32 v13, 1, v12")
    e("buffer_load_ushort v14, v13, s[16:19], 0 offen")
    e("s_lshl_b32 s20, s12, 6")
    e("v_lshlrev_b32 v15, 5, v8")
    e("v_lshl_add_u32 v15, v7, 2, v15")
    e("v_add_u32 v15, s20, v15")
    e("v_lshlrev_b32 v16, 12, v12")
    e("v_lshl_add_u32 v16, v15, 1, v16")
    e("v_lshlrev_b32 v17, 10, v15")
    e("v_add_u32 v17, v17, v13")
    e(f"s_mov_b32 s22, {G.YA_OFF}")
    e("s_waitcnt vmcnt(0)")
    e("v_lshlrev_b32 v14, 16, v14")
    for g in range(4):
        e(f"buffer_load_dwordx2 v[18:19], v16, s[8:11], s22 offen offset:{16*g}")
        for j in range(4):
            e(f"buffer_load_ushort v{20+j}, v17, s[28:31], 0 offen offset:{(8*g+j)*1024}" if (8*g+j)*1024 < 4096 else f"s_nop 0")
        if (8*g)*1024 >= 4096:
            e(f"s_mov_b32 s23, {8*g*1024}")
            for j in range(4):
                e(f"buffer_load_ushort v{20+j}, v17, s[28:31], s23 offen offset:{j*1024}")
        else:
            e(f"s_mov_b32 s23, 0")
        e("s_waitcnt vmcnt(0)")
        x = 24
        for j in range(4):
            e(f"v_mov_b32 v{x+j}, v{ACC+4*g+j}")
            e(f"v_lshlrev_b32 v{20+j}, 16, v{20+j}")
        G.rbf_inplace(x, x+1, 30); G.rbf_inplace(x+2, x+3, 30)
        for j in range(4):
            e(f"v_add_f32 v{x+j}, v{x+j}, v14")
        G.rbf_inplace(x, x+1, 30); G.rbf_inplace(x+2, x+3, 30)
        e("v_lshlrev_b32 v32, 16, v18"); e("v_add_f32 v20, v20, v32")
        e("v_and_b32 v32, 0xffff0000, v18"); e("v_add_f32 v21, v21, v32")
        e("v_lshlrev_b32 v32, 16, v19"); e("v_add_f32 v22, v22, v32")
        e("v_and_b32 v32, 0xffff0000, v19"); e("v_add_f32 v23, v23, v32")
        G.rbf_inplace(20, 21, 30); G.rbf_inplace(22, 23, 30)
        for j in range(4):
            e(f"v_add_f32 v{x+j}, v{x+j}, v{20+j}")
        e(f"v_cvt_pk_bf16_f32 v32, v{x}, v{x+1}")
        e(f"v_cvt_pk_bf16_f32 v33, v{x+2}, v{x+3}")
        off = (lambda j: (8*g+j)*1024 if 8*g*1024 < 4096 else j*1024)
        e(f"buffer_store_short v32, v17, s[32:35], s23 offen offset:{off(0)}")
        e(f"buffer_store_short_d16_hi v32, v17, s[32:35], s23 offen offset:{off(1)}")
        e(f"buffer_store_short v33, v17, s[32:35], s23 offen offset:{off(2)}")
        e(f"buffer_store_short_d16_hi v33, v17, s[32:35], s23 offen offset:{off(3)}")
    e("fin_end:")
    e("s_endpgm")
```

```python
import sys
NAME = "parallel_sum__ssm_conv_s4__mixer_channel_mlp__prompt"

Y2_OFF = 0
XNT_OFF = 2 << 20
W1T_OFF = 4 << 20
W2T_OFF = 6 << 20
KC_OFF = 8 << 20
KC_PITCH = 672 * 4
H_OFF = 10 << 20
YA_OFF = 18 << 20
WS_REC = 32 << 20

L = []
def e(s=""):
    L.append(s)

def vr(a, n):
    return f"v[{a}:{a+n-1}]"
def sr(a, n):
    return f"s[{a}:{a+n-1}]"

def srd(sd, sbase, nbytes):
    e(f"s_mov_b32 s{sd}, s{sbase}")
    e(f"s_and_b32 s{sd+1}, s{sbase+1}, 0xffff")
    e(f"s_mov_b32 s{sd+2}, {nbytes}")
    e(f"s_mov_b32 s{sd+3}, 0x00020000")

def round_pair(dst_pk, a, b):
    e(f"v_cvt_pk_bf16_f32 v{dst_pk}, v{a}, v{b}")

def rbf_inplace(a, b, tmp):
    e(f"v_cvt_pk_bf16_f32 v{tmp}, v{a}, v{b}")
    e(f"v_lshlrev_b32 v{a}, 16, v{tmp}")
    e(f"v_and_b32 v{b}, 0xffff0000, v{tmp}")

def reduce32(v, t, t2):
    for r in (8, 4, 2, 1):
        e("s_nop 1")
        e(f"v_add_f32_dpp v{t}, v{v}, v{v} row_ror:{r} row_mask:0xf bank_mask:0xf")
        v, t = t, v
    e("s_nop 1")
    e(f"ds_swizzle_b32 v{t2}, v{v} offset:0x401F")
    e("s_waitcnt lgkmcnt(0)")
    e(f"v_add_f32 v{v}, v{v}, v{t2}")
    return v

LOG2E = 0x3fb8aa3b
INV2PI = 0x3e22f983

N_LN, N_KG, N_TR = 256, 512, 448
N_PREP = N_LN + N_KG + N_TR

def layernorm_regs(X, tmpA, tmpB, tmpC):
    s = tmpA
    e(f"v_add_f32 v{s}, v{X}, v{X+1}")
    for i in range(2, 16):
        e(f"v_add_f32 v{s}, v{s}, v{X+i}")
    s = reduce32(s, tmpB, tmpC)
    mean = s
    e(f"v_mul_f32 v{mean}, 0x3b000000, v{mean}")
    q = tmpA if mean != tmpA else tmpB
    other = [t for t in (tmpA, tmpB, tmpC) if t not in (mean, q)][0]
    e(f"v_sub_f32 v{q}, v{X}, v{mean}")
    e(f"v_mul_f32 v{q}, v{q}, v{q}")
    for i in range(1, 16):
        e(f"v_sub_f32 v{other}, v{X+i}, v{mean}")
        e(f"v_fmac_f32 v{q}, v{other}, v{other}")
    T3 = 62; T4 = 63
    q = reduce32(q, T3, T4)
    e(f"v_mul_f32 v{q}, 0x3b000000, v{q}")
    rbf_inplace(mean, q, T4)
    e(f"v_add_f32 v{q}, 0x3727c5ac, v{q}")
    e(f"v_cvt_pk_bf16_f32 v{T4}, v{q}, v{q}")
    e(f"v_lshlrev_b32 v{q}, 16, v{T4}")
    e(f"v_sqrt_f32 v{q}, v{q}")
    e("s_nop 0")
    e(f"v_cvt_pk_bf16_f32 v{T4}, v{q}, v{q}")
    e(f"v_lshlrev_b32 v{q}, 16, v{T4}")
    e(f"v_rcp_f32 v{q}, v{q}")
    e("s_nop 0")
    for i in range(0, 16, 2):
        e(f"v_sub_f32 v{X+i}, v{X+i}, v{mean}")
        e(f"v_sub_f32 v{X+i+1}, v{X+i+1}, v{mean}")
        rbf_inplace(X+i, X+i+1, T4)
        e(f"v_mul_f32 v{X+i}, v{X+i}, v{q}")
        e(f"v_mul_f32 v{X+i+1}, v{X+i+1}, v{q}")
        rbf_inplace(X+i, X+i+1, T4)

def prep_kernel():
    e(".p2align 8")
    e("prep_kernel:")
    e(f"s_cmp_ge_u32 s2, {N_PREP}")
    e("s_cbranch_scc1 prep_end")
    e("s_load_dwordx2 s[4:5], s[0:1], 128")
    e("s_waitcnt lgkmcnt(0)")
    srd(8, 4, WS_REC)
    e(f"s_cmp_ge_u32 s2, {N_LN}")
    e("s_cbranch_scc1 prep_not_ln")
    e("s_load_dwordx2 s[6:7], s[0:1], 0")
    e("s_waitcnt lgkmcnt(0)")
    srd(12, 6, 2048*512*2)
    e("v_lshrrev_b32 v1, 5, v0")
    e("v_and_b32 v2, 31, v0")
    e("v_lshlrev_b32 v3, 10, v1")
    e("v_lshl_add_u32 v3, v2, 5, v3")
    e("s_lshl_b32 s3, s2, 13")
    e("v_add_u32 v4, s3, v3")
    e("buffer_load_dwordx4 v[8:11], v4, s[12:15], 0 offen")
    e("buffer_load_dwordx4 v[12:15], v4, s[12:15], 0 offen offset:16")
    e("s_waitcnt vmcnt(0)")
    X = 16
    for i in range(8):
        e(f"v_lshlrev_b32 v{X+2*i}, 16, v{8+i}")
        e(f"v_and_b32 v{X+2*i+1}, 0xffff0000, v{8+i}")
    layernorm_regs(X, 40, 41, 42)
    for i in range(8):
        e(f"v_cvt_pk_bf16_f32 v{8+i}, v{X+2*i}, v{X+2*i+1}")
    e("ds_write_b128 v3, v[8:11]")
    e("ds_write_b128 v3, v[12:15] offset:16")
    layernorm_regs(X, 40, 41, 42)
    for i in range(8):
        e(f"v_cvt_pk_bf16_f32 v{8+i}, v{X+2*i}, v{X+2*i+1}")
    e(f"buffer_store_dwordx4 v[8:11], v4, s[8:11], 0 offen")
    e(f"buffer_store_dwordx4 v[12:15], v4, s[8:11], 0 offen offset:16")
    e("s_waitcnt lgkmcnt(0)")
    e("s_barrier")
    for half in range(2):
        e(f"v_lshlrev_b32 v5, 1, v0")
        for r in range(8):
            e(f"ds_read_u16 v{16+r}, v5 offset:{r*1024 + half*512}")
        e("s_waitcnt lgkmcnt(0)")
        for r in range(4):
            e(f"v_lshl_or_b32 v{24+r}, v{16+2*r+1}, 16, v{16+2*r}")
        e(f"v_lshlrev_b32 v6, 4, v0")
        e(f"s_add_u32 s16, s3, {XNT_OFF + half*4096}")
        e(f"buffer_store_dwordx4 v[24:27], v6, s[8:11], s16 offen")
        e("s_nop 1")
    e("s_branch prep_end")
    e("prep_not_ln:")
    e(f"s_cmp_ge_u32 s2, {N_LN + N_KG}")
    e("s_cbranch_scc1 prep_trans")
    kgen()
    e("s_branch prep_end")
    e("prep_trans:")
    trans()
    e("prep_end:")
    e("s_endpgm")

def kgen():
    global e
    e(f"s_sub_u32 s3, s2, {N_LN}")
    e("s_load_dwordx8 s[16:23], s[0:1], 8")
    e("s_load_dwordx4 s[24:27], s[0:1], 40")
    e("s_load_dwordx2 s[28:29], s[0:1], 56")
    e("v_lshrrev_b32 v1, 6, v0")
    e("v_and_b32 v2, 15, v0")
    e("v_bfe_u32 v3, v0, 4, 2")
    e("s_lshl_b32 s30, s3, 8")
    e("v_lshlrev_b32 v4, 6, v3")
    e("v_add_u32 v4, s30, v4")
    e("s_waitcnt lgkmcnt(0)")
    srd(32, 28, 1024)
    e("s_lshl_b32 s31, s3, 1")
    e("v_mov_b32 v5, s31")
    e("buffer_load_ushort v5, v5, s[32:35], 0 offen")
    P = 64
    for ai in range(6):
        srd(40 + 4*ai, 16 + 2*ai, 512*128*2)
    for ai in range(6):
        for c in range(4):
            e(f"buffer_load_dwordx4 {vr(P+16*ai+4*c,4)}, v4, {sr(40+4*ai,4)}, 0 offen offset:{16*c}")
    e("s_waitcnt vmcnt(0)")
    e("v_lshlrev_b32 v5, 16, v5")
    e(f"v_mul_f32 v5, {LOG2E}, v5")
    e("v_exp_f32 v5, v5")
    e("s_nop 0")
    e("v_cvt_pk_bf16_f32 v5, v5, v5")
    e("v_lshlrev_b32 v5, 16, v5")
    e("v_cvt_f32_u32 v6, v2")
    e("v_lshlrev_b32 v7, v1, 1")
    e("v_cvt_f32_u32 v7, v7")
    e("v_mul_f32 v8, v6, v7")
    e("v_mul_f32 v9, 16.0, v8")
    e("v_mul_f32 v10, 0x43000000, v7")
    e("v_cmp_eq_u32 vcc, 0, v1")
    e("s_nop 1")
    e("v_cndmask_b32 v10, v10, 0, vcc")
    e("v_add_f32 v9, v9, v10")
    ACC = 12
    e("v_mov_b32 v12, 0"); e("v_mov_b32 v13, 0"); e("v_mov_b32 v14, 0"); e("v_mov_b32 v15, 0")
    AF, BF = 16, 20
    for q in range(8):
        streams = []
        for ee in range(4):
            cur = []
            streams.append(cur)
            e = cur.append
            n = 4*q + ee
            def par(ai):
                reg = P + 16*ai + n//2
                return reg, (n & 1)
            t = 24 + 10*ee
            def unpack(dst, ai):
                reg, hi = par(ai)
                if hi: e(f"v_and_b32 v{dst}, 0xffff0000, v{reg}")
                else:  e(f"v_lshlrev_b32 v{dst}, 16, v{reg}")
            a2, b2, dBr, dBi, Cr, Ci, Wr, Wi = t, t+1, t+2, t+3, t+4, t+5, t+6, t+7
            for dst, ai in ((a2,0),(b2,1),(dBr,2),(dBi,3),(Cr,4),(Ci,5)):
                unpack(dst, ai)
            e(f"v_mul_f32 v{a2}, v{a2}, v5")
            e(f"v_mul_f32 v{b2}, v{b2}, v5")
            e(f"v_mul_f32 v{dBr}, v{dBr}, v5")
            e(f"v_mul_f32 v{dBi}, v{dBi}, v5")
            e(f"v_mul_f32 v{a2}, {LOG2E}, v{a2}")
            e(f"v_mul_f32 v{b2}, {INV2PI}, v{b2}")
            e(f"v_mul_f32 v{Wr}, v{Cr}, v{dBr}")
            e(f"v_fma_f32 v{Wr}, -v{Ci}, v{dBi}, v{Wr}")
            e(f"v_mul_f32 v{Wi}, v{Cr}, v{dBi}")
            e(f"v_fma_f32 v{Wi}, v{Ci}, v{dBr}, v{Wi}")
            def cexp(R, outr, outi, tm):
                e(f"v_mul_f32 v{tm}, v{a2}, v{R}")
                e(f"v_exp_f32 v{tm}, v{tm}")
                e(f"v_mul_f32 v{tm+1}, v{b2}, v{R}")
                e(f"v_fract_f32 v{tm+1}, v{tm+1}")
                e(f"v_cos_f32 v{outr}, v{tm+1}")
                e(f"v_sin_f32 v{outi}, v{tm+1}")
                e("s_nop 0")
                e(f"v_mul_f32 v{outr}, v{outr}, v{tm}")
                e(f"v_mul_f32 v{outi}, v{outi}, v{tm}")
            cexp(8, t+8, t+9, 160+2*ee)
            e(f"v_cvt_pk_bf16_f32 v{BF+ee}, v{t+8}, v{t+9}")
            cexp(9, t+8, t+9, 160+2*ee)
            e(f"v_mul_f32 v{dBr}, v{Wr}, v{t+8}")
            e(f"v_fma_f32 v{dBr}, -v{Wi}, v{t+9}, v{dBr}")
            e(f"v_mul_f32 v{dBi}, v{Wr}, v{t+9}")
            e(f"v_fma_f32 v{dBi}, v{Wi}, v{t+8}, v{dBi}")
            e(f"v_cvt_pk_bf16_f32 v{AF+ee}, v{dBr}, -v{dBi}")
        e = L.append
        for i in range(max(len(x) for x in streams)):
            for x in streams:
                if i < len(x) and x[i] != "s_nop 0": e(x[i])
        e("s_nop 1")
        e(f"v_mfma_f32_16x16x32_bf16 v[12:15], {vr(AF,4)}, {vr(BF,4)}, v[12:15]")
        e("s_nop 7")
    e("s_nop 7")
    e("v_lshlrev_b32 v16, 7, v1")
    e("v_add_u32 v16, 128, v16")
    e("v_cmp_eq_u32 vcc, 0, v1")
    e("s_nop 1")
    e("v_cndmask_b32 v16, v16, 0, vcc")
    e("v_lshl_add_u32 v16, v3, 6, v16")
    e("v_add_u32 v16, v16, v2")
    e("v_lshlrev_b32 v16, 2, v16")
    e(f"s_mul_i32 s30, s3, {KC_PITCH}")
    e(f"s_add_u32 s30, s30, {KC_OFF}")
    e("v_cmp_gt_u32 vcc, 2, v3")
    e("v_cmp_eq_u32 s[36:37], 0, v1")
    e("s_or_b64 s[36:37], s[36:37], vcc")
    e("v_cmp_eq_u32 vcc, 3, v1")
    e("v_cmp_eq_u32 s[38:39], 2, v3")
    e("s_and_b64 s[38:39], s[38:39], vcc")
    e("s_or_b64 s[38:39], s[38:39], s[36:37]")
    e("s_mov_b64 exec, s[38:39]")
    e("buffer_store_dword v12, v16, s[8:11], s30 offen")
    e("s_mov_b64 exec, s[36:37]")
    e("buffer_store_dword v13, v16, s[8:11], s30 offen offset:64")
    e("buffer_store_dword v14, v16, s[8:11], s30 offen offset:128")
    e("buffer_store_dword v15, v16, s[8:11], s30 offen offset:192")
    e("s_mov_b64 exec, -1")

def trans():
    e(f"s_sub_u32 s3, s2, {N_LN + N_KG}")
    e("s_load_dwordx2 s[6:7], s[0:1], 80")
    e("s_load_dwordx2 s[16:17], s[0:1], 96")
    e("s_waitcnt lgkmcnt(0)")
    e("s_cmp_ge_u32 s3, 224")
    e("s_cbranch_scc1 tr_w2")
    e("s_mul_i32 s18, s3, 9363")
    e("s_lshr_b32 s18, s18, 18")
    e("s_mul_i32 s19, s18, 28")
    e("s_sub_u32 s19, s3, s19")
    e("s_mov_b32 s20, 3584")
    e("s_mov_b32 s21, 1024")
    e(f"s_mov_b32 s22, {W1T_OFF}")
    srd(12, 6, 512*1792*2)
    e("s_branch tr_go")
    e("tr_w2:")
    e("s_sub_u32 s3, s3, 224")
    e("s_lshr_b32 s18, s3, 3")
    e("s_and_b32 s19, s3, 7")
    e("s_mov_b32 s20, 1024")
    e("s_mov_b32 s21, 3584")
    e(f"s_mov_b32 s22, {W2T_OFF}")
    srd(12, 16, 512*1792*2)
    e("tr_go:")
    e("v_lshrrev_b32 v1, 3, v0")
    e("v_and_b32 v2, 7, v0")
    e("s_lshl_b32 s23, s18, 6")
    e("s_mul_i32 s23, s23, s20")
    e("s_lshl_b32 s24, s19, 7")
    e("s_add_u32 s23, s23, s24")
    e("v_mul_lo_u32 v3, v1, s20")
    e("v_lshl_add_u32 v3, v2, 4, v3")
    e("v_add_u32 v3, s23, v3")
    e("s_lshl_b32 s25, s20, 5")
    e("v_add_u32 v4, s25, v3")
    e("buffer_load_dwordx4 v[8:11], v3, s[12:15], 0 offen")
    e("buffer_load_dwordx4 v[12:15], v4, s[12:15], 0 offen")
    e("v_mul_u32_u24 v5, 136, v1")
    e("v_lshl_add_u32 v5, v2, 4, v5")
    e("s_waitcnt vmcnt(0)")
    e("ds_write_b64 v5, v[8:9]")
    e("ds_write_b64 v5, v[10:11] offset:8")
    e(f"ds_write_b64 v5, v[12:13] offset:{32*136}")
    e(f"ds_write_b64 v5, v[14:15] offset:{32*136+8}")
    e("s_waitcnt lgkmcnt(0)")
    e("s_barrier")
    e("s_lshl_b32 s23, s19, 6")
    e("s_mul_i32 s23, s23, s21")
    e("s_lshl_b32 s24, s18, 7")
    e("s_add_u32 s23, s23, s24")
    e("s_add_u32 s23, s23, s22")
    e("s_lshl_b32 s26, s21, 5")
    for i in range(2):
        e(f"v_mul_u32_u24 v5, {8*136}, v2")
        e(f"v_lshl_add_u32 v5, v1, 1, v5")
        for r in range(8):
            e(f"ds_read_u16 v{16+r}, v5 offset:{r*136 + i*64}")
        e("s_waitcnt lgkmcnt(0)")
        for r in range(4):
            e(f"v_lshl_or_b32 v{24+r}, v{16+2*r+1}, 16, v{16+2*r}")
        e("v_mul_lo_u32 v6, v1, s21")
        e("v_lshl_add_u32 v6, v2, 4, v6")
        if i: e("v_add_u32 v6, s26, v6")
        e("buffer_store_dwordx4 v[24:27], v6, s[8:11], s23 offen")
        e("s_nop 1")

def kd(name, vgpr, lds_static=0):
    e(f".amdhsa_kernel {name}")
    e(f"  .amdhsa_next_free_vgpr {vgpr}")
    e("  .amdhsa_next_free_sgpr 102")
    e(f"  .amdhsa_accum_offset {vgpr}")
    e("  .amdhsa_group_segment_fixed_size 0")
    e("  .amdhsa_kernarg_size 136")
    e("  .amdhsa_user_sgpr_count 2")
    e("  .amdhsa_user_sgpr_kernarg_segment_ptr 1")
    e("  .amdhsa_system_sgpr_workgroup_id_x 1")
    e(".end_amdhsa_kernel")

def main():
    import gen2
    e(f"; @launch kernel=prep_kernel grid=({N_PREP},1,1) block=(256,1,1) lds=8704")
    e(f"; @launch kernel=mid_kernel grid=({gen2.N_MID},1,1) block=(256,1,1) lds={gen2.MID_LDS}")
    e(f"; @launch kernel=fin_kernel grid=({gen2.N_FIN},1,1) block=(256,1,1) lds={gen2.FIN_LDS}")
    e('.amdgcn_target "amdgcn-amd-amdhsa--gfx950"')
    e(".text")
    for k in ("prep_kernel", "mid_kernel", "fin_kernel"):
        e(f".globl {k}")
        e(f".type {k},@function")
    prep_kernel()
    gen2.emit(sys.modules[__name__])
    e('.section .rodata,"a"')
    e(".p2align 6")
    kd("prep_kernel", 168)
    e(".p2align 6")
    kd("mid_kernel", gen2.MID_VGPR)
    e(".p2align 6")
    kd("fin_kernel", gen2.FIN_VGPR)
    open(f"cdna_kernels/{NAME}.s", "w").write("\n".join(L) + "\n")

if __name__ == "__main__":
    main()
```

```python
N_G1, N_CV = 224, 256
N_MID = N_G1 + N_CV
MID_LDS = 73728
MID_VGPR = 240
N_FIN = 256
FIN_LDS = 69632
FIN_VGPR = 240

def emit(G):
    e, vr, srd = G.e, G.vr, G.srd
    GELU_C = 0xc0135761
    e(".p2align 8")
    e("mid_kernel:")
    e(f"s_cmp_ge_u32 s2, {N_MID}")
    e("s_cbranch_scc1 mid_end")
    e("s_load_dwordx2 s[4:5], s[0:1], 128")
    e("s_waitcnt lgkmcnt(0)")
    srd(8, 4, G.WS_REC)
    e(f"s_cmp_ge_u32 s2, {N_G1}")
    e("s_cbranch_scc1 mid_conv")
    e("s_mul_i32 s12, s2, 4682")
    e("s_lshr_b32 s12, s12, 16")
    e("s_mul_i32 s13, s12, 14")
    e("s_sub_u32 s13, s2, s13")
    e("s_lshl_b32 s14, s12, 17")
    e(f"s_add_u32 s14, s14, {G.Y2_OFF}")
    e("s_lshl_b32 s15, s13, 17")
    e(f"s_add_u32 s15, s15, {G.W1T_OFF}")
    e("v_lshrrev_b32 v1, 3, v0")
    e("v_and_b32 v2, 7, v0")
    e("v_lshlrev_b32 v3, 10, v1")
    e("v_lshl_add_u32 v3, v2, 4, v3")
    e("v_mul_u32_u24 v4, 144, v1")
    e("v_lshl_add_u32 v4, v2, 4, v4")
    e("v_add_u32 v14, 18432, v4")
    e("v_lshrrev_b32 v5, 6, v0")
    e("v_and_b32 v6, 31, v0")
    e("v_bfe_u32 v7, v0, 5, 1")
    e("v_lshrrev_b32 v8, 1, v5")
    e("v_and_b32 v9, 1, v5")
    e("v_lshl_add_u32 v10, v8, 6, v6")
    e("v_mul_u32_u24 v10, 144, v10")
    e("v_lshl_add_u32 v10, v7, 4, v10")
    e("v_lshl_add_u32 v11, v9, 6, v6")
    e("v_mul_u32_u24 v11, 144, v11")
    e("v_lshl_add_u32 v11, v7, 4, v11")
    e("v_add_u32 v11, 18432, v11")
    ACC = 64
    for i in range(64):
        e(f"v_mov_b32 v{ACC+i}, 0")
    ST = 16
    FR = 48
    def loads(c):
        ST = 144 + 32*(c % 3)
        for i in range(4):
            e(f"s_add_u32 s16, s14, {c*128 + i*32768}")
            e(f"buffer_load_dwordx4 {vr(ST+4*i,4)}, v3, s[8:11], s16 offen")
        for i in range(4):
            e(f"s_add_u32 s16, s15, {c*128 + i*32768}")
            e(f"buffer_load_dwordx4 {vr(ST+16+4*i,4)}, v3, s[8:11], s16 offen")
    def writes(b, c):
        ST = 144 + 32*(c % 3)
        for i in range(4):
            e(f"ds_write_b128 v4, {vr(ST+4*i,4)} offset:{b*36864 + i*32*144}")
        for i in range(4):
            e(f"ds_write_b128 v14, {vr(ST+16+4*i,4)} offset:{b*36864 + i*32*144}")
    loads(0); loads(1); loads(2)
    e("s_waitcnt vmcnt(16)")
    writes(0, 0)
    e("s_waitcnt lgkmcnt(0)")
    e("s_barrier")
    for c in range(8):
        b = c & 1
        def frd(ks):
            o = b*36864 + ks*32; F = FR + 128*(ks & 1) if False else (FR if (ks & 1) == 0 else 128)
            e(f"ds_read_b128 {vr(F,4)}, v10 offset:{o}")
            e(f"ds_read_b128 {vr(F+4,4)}, v10 offset:{o+32*144}")
            e(f"ds_read_b128 {vr(F+8,4)}, v11 offset:{o}")
            e(f"ds_read_b128 {vr(F+12,4)}, v11 offset:{o+32*144}")
        frd(0)
        for ks in range(4):
            F = FR if (ks & 1) == 0 else 128
            if ks < 3:
                frd(ks+1)
                e("s_waitcnt lgkmcnt(4)")
            else:
                e("s_waitcnt lgkmcnt(0)")
            for nt in range(2):
                for mt in range(2):
                    a = ACC + 16*(2*nt+mt)
                    e(f"v_mfma_f32_32x32x16_bf16 {vr(a,16)}, {vr(F+8+4*nt,4)}, {vr(F+4*mt,4)}, {vr(a,16)}")
        if c < 7:
            e(f"s_waitcnt vmcnt({8*min(1, 6-c)})")
            writes(b ^ 1, c+1)
            if c + 3 < 8: loads(c+3)
            e("s_waitcnt lgkmcnt(0)")
            e("s_barrier")
    e("s_nop 15")
    e("s_nop 7")
    e("s_load_dwordx2 s[6:7], s[0:1], 88")
    e("s_waitcnt lgkmcnt(0)")
    srd(16, 6, 1792*2)
    e("s_lshl_b32 s20, s13, 8")
    e("v_lshlrev_b32 v12, 7, v9")
    e("v_lshl_add_u32 v12, v7, 3, v12")
    e("v_add_u32 v12, s20, v12")
    e("v_lshl_add_u32 v13, v8, 6, v6")
    e("s_mov_b32 s21, 3584")
    e("v_mul_lo_u32 v13, v13, s21")
    e("v_add_u32 v13, v13, v12")
    e("s_mul_i32 s22, s12, 458752")
    e(f"s_add_u32 s22, s22, {G.H_OFF}")
    for nt in range(2):
        for g in range(4):
            e(f"buffer_load_dwordx2 {vr(16+2*g,2)}, v12, s[16:19], 0 offen offset:{nt*64+g*16}")
        e("s_waitcnt vmcnt(0)")
        for mt in range(2):
            a = ACC + 16*(2*nt+mt)
            for g in range(4):
                x = 24
                for j in range(4):
                    e(f"v_mov_b32 v{x+j}, v{a+4*g+j}")
                G.rbf_inplace(x, x+1, 30); G.rbf_inplace(x+2, x+3, 30)
                e(f"v_lshlrev_b32 v28, 16, v{16+2*g}")
                e(f"v_add_f32 v{x}, v{x}, v28")
                e(f"v_and_b32 v28, 0xffff0000, v{16+2*g}")
                e(f"v_add_f32 v{x+1}, v{x+1}, v28")
                e(f"v_lshlrev_b32 v28, 16, v{17+2*g}")
                e(f"v_add_f32 v{x+2}, v{x+2}, v28")
                e(f"v_and_b32 v28, 0xffff0000, v{17+2*g}")
                e(f"v_add_f32 v{x+3}, v{x+3}, v28")
                G.rbf_inplace(x, x+1, 30); G.rbf_inplace(x+2, x+3, 30)
                for j in range(4):
                    v = x + j
                    e(f"v_mul_f32 v28, v{v}, v{v}")
                    e(f"v_mul_f32 v28, 0x3d372713, v28")
                    e(f"v_fma_f32 v28, v28, v{v}, v{v}")
                    e(f"v_mul_f32 v28, {GELU_C}, v28")
                    e(f"v_exp_f32 v28, v28")
                    e("s_nop 0")
                    e(f"v_add_f32 v28, 1.0, v28")
                    e(f"v_rcp_f32 v28, v28")
                    e("s_nop 0")
                    e(f"v_mul_f32 v{v}, v{v}, v28")
                e(f"v_cvt_pk_bf16_f32 v32, v{x}, v{x+1}")
                e(f"v_cvt_pk_bf16_f32 v33, v{x+2}, v{x+3}")
                e(f"s_add_u32 s23, s22, {mt*32*3584}")
                e(f"buffer_store_dwordx2 v[32:33], v13, s[8:11], s23 offen offset:{nt*64+g*16}")
    e("s_branch mid_end")
    UREG = 9088; KB = 2*UREG; KCP = 4240; KREG = 4*KCP
    e("mid_conv:")
    e(f"s_sub_u32 s3, s2, {N_G1}")
    e("s_load_dwordx2 s[6:7], s[0:1], 64")
    e("v_mov_b32 v8, 0"); e("v_mov_b32 v9, 0"); e("v_mov_b32 v10, 0"); e("v_mov_b32 v11, 0")
    e("v_lshlrev_b32 v1, 4, v0")
    for c in range(2):
        e(f"ds_write_b128 v1, v[8:11] offset:{c*UREG}")
        e("v_cmp_gt_u32 vcc, 24, v0")
        e("s_and_saveexec_b64 s[20:21], vcc")
        e(f"ds_write_b128 v1, v[8:11] offset:{c*UREG + 4096}")
        e("s_mov_b64 exec, s[20:21]")
    for i in range(8):
        e(f"ds_write_b128 v1, v[8:11] offset:{KB + 4096*i}")
    e("v_cmp_gt_u32 vcc, 72, v0")
    e("s_and_saveexec_b64 s[20:21], vcc")
    e(f"ds_write_b128 v1, v[8:11] offset:{KB + 4096*8}")
    e("s_mov_b64 exec, s[20:21]")
    e("s_waitcnt lgkmcnt(0)")
    e("s_barrier")
    e("s_lshl_b32 s12, s3, 5")
    e(f"s_add_u32 s12, s12, {G.XNT_OFF}")
    e("v_lshlrev_b32 v2, 13, v0")
    e("buffer_load_dwordx4 v[12:15], v2, s[8:11], s12 offen")
    e("buffer_load_dwordx4 v[16:19], v2, s[8:11], s12 offen offset:16")
    e("v_lshrrev_b32 v3, 3, v0")
    e("v_add_u32 v3, 31, v3")
    e("v_mul_u32_u24 v3, 144, v3")
    e("v_and_b32 v4, 7, v0")
    e("v_lshl_add_u32 v3, v4, 4, v3")
    e("s_waitcnt vmcnt(0)")
    e("ds_write_b128 v3, v[12:15]")
    e(f"ds_write_b128 v3, v[16:19] offset:{UREG}")
    e(f"s_mul_i32 s13, s3, {2*G.KC_PITCH}")
    e(f"s_add_u32 s13, s13, {G.KC_OFF}")
    for i in range(8):
        e(f"v_add_u32 v5, {256*i}, v0")
        e("v_cvt_f32_u32 v6, v5")
        e("v_cvt_pk_bf16_f32 v6, v6, v6")
        e("v_and_b32 v6, 0xffff, v6")
        e("v_subrev_u32 v6, 17024, v6")
        e("v_cmp_gt_u32 vcc, 256, v5")
        e("s_nop 1")
        e("v_cndmask_b32 v6, v6, v5, vcc")
        e("v_lshlrev_b32 v6, 2, v6")
        e(f"buffer_load_dword v{20+2*i}, v6, s[8:11], s13 offen")
        e(f"buffer_load_dword v{21+2*i}, v6, s[8:11], s13 offen offset:{G.KC_PITCH}")
    e("s_waitcnt vmcnt(0)")
    e("v_lshlrev_b32 v7, 1, v0")
    e("v_sub_u32 v7, 4094, v7")
    for i in range(8):
        e(f"v_cvt_pk_bf16_f32 v5, v{20+2*i}, v{21+2*i}")
        e(f"ds_write_b16 v7, v5 offset:{KB + 4096 - 512*i - 4096 + 0}" if False else f"v_subrev_u32 v6, {512*i}, v7")
        for cc in range(4):
            e(f"ds_write_b16 v6, v5 offset:{KB + cc*KCP + 8 - 2*cc}")
            e(f"ds_write_b16_d16_hi v6, v5 offset:{KB + KREG + cc*KCP + 8 - 2*cc}")
    e("s_waitcnt lgkmcnt(0)")
    e("s_barrier")
    e("v_lshrrev_b32 v5, 6, v0")
    e("v_lshrrev_b32 v8, 1, v5")
    e("v_and_b32 v9, 1, v5")
    e("v_and_b32 v6, 31, v0")
    e("v_bfe_u32 v7, v0, 5, 1")
    e("v_lshlrev_b32 v10, 5, v9")
    e("v_add_u32 v10, v10, v6")
    e("v_sub_u32 v10, 63, v10")
    e("v_lshl_add_u32 v10, v7, 3, v10")
    e("v_and_b32 v13, 3, v10")
    e("v_and_b32 v10, -4, v10")
    e("v_lshlrev_b32 v10, 1, v10")
    e(f"v_mul_u32_u24 v13, {KCP}, v13")
    e("v_add3_u32 v10, v10, v13, 8")
    e(f"v_mul_u32_u24 v12, {KREG}, v8")
    e("v_add_u32 v10, v10, v12")
    e(f"v_add_u32 v10, {KB}, v10")
    e("v_mul_u32_u24 v11, 144, v6")
    e("v_lshl_add_u32 v11, v7, 4, v11")
    e(f"v_mul_u32_u24 v12, {UREG}, v8")
    e("v_add_u32 v11, v11, v12")
    ACC = 64
    for i in range(16):
        e(f"v_mov_b32 v{ACC+i}, 0")
    steps = [(m, j0) for m in range(32) for j0 in (0, 16, 32, 48)]
    def rd(k, slot):
        m, j0 = steps[k]
        e(f"ds_read_b64 {vr(16+8*slot,2)}, v10 offset:{2*(64*(31-m)+j0)}")
        e(f"ds_read_b64 {vr(18+8*slot,2)}, v10 offset:{2*(64*(31-m)+j0)+8}")
        e(f"ds_read_b128 {vr(20+8*slot,4)}, v11 offset:{(31-m)*144 + 2*j0}")
    NS = 4
    for k in range(NS-1): rd(k, k)
    for k in range(len(steps)):
        if k + NS - 1 < len(steps):
            rd(k+NS-1, (k+NS-1) % NS)
            e(f"s_waitcnt lgkmcnt({3*(NS-1)})")
        else:
            e(f"s_waitcnt lgkmcnt({3*(len(steps)-1-k)})")
        s = k % NS
        e(f"v_mfma_f32_32x32x16_bf16 {vr(ACC,16)}, {vr(16+8*s,4)}, {vr(20+8*s,4)}, {vr(ACC,16)}")
    e("s_nop 15")
    e("s_nop 7")
    e("s_waitcnt lgkmcnt(0)")
    srd(16, 6, 1024)
    e("s_lshl_b32 s20, s3, 2")
    e("v_lshlrev_b32 v13, 1, v8")
    e("v_add_u32 v13, s20, v13")
    e("buffer_load_ushort v13, v13, s[16:19], 0 offen")
    e("v_mul_u32_u24 v14, 144, v6")
    e("v_add_u32 v14, v14, v12")
    e("v_lshl_add_u32 v14, v9, 6, v14")
    e("v_lshl_add_u32 v14, v7, 3, v14")
    e("v_lshlrev_b32 v15, 7, v6")
    e("v_lshl_add_u32 v15, v9, 6, v15")
    e("v_lshl_add_u32 v15, v7, 3, v15")
    e("v_lshl_add_u32 v15, v8, 12, v15")
    e("s_lshl_b32 s21, s3, 13")
    e(f"s_add_u32 s21, s21, {G.YA_OFF}")
    e("s_waitcnt vmcnt(0)")
    e("v_lshlrev_b32 v13, 16, v13")
    for g in range(4):
        e(f"ds_read_b64 v[16:17], v14 offset:{31*144 + 16*g}")
        e("s_waitcnt lgkmcnt(0)")
        x = 24
        e("v_lshlrev_b32 v20, 16, v16"); e("v_and_b32 v21, 0xffff0000, v16")
        e("v_lshlrev_b32 v22, 16, v17"); e("v_and_b32 v23, 0xffff0000, v17")
        for j in range(4):
            e(f"v_mul_f32 v{20+j}, v{20+j}, v13")
            e(f"v_mov_b32 v{x+j}, v{ACC+4*g+j}")
        G.rbf_inplace(20, 21, 30); G.rbf_inplace(22, 23, 30)
        G.rbf_inplace(x, x+1, 30); G.rbf_inplace(x+2, x+3, 30)
        for j in range(4):
            e(f"v_add_f32 v{x+j}, v{x+j}, v{20+j}")
        e(f"v_cvt_pk_bf16_f32 v32, v{x}, v{x+1}")
        e(f"v_cvt_pk_bf16_f32 v33, v{x+2}, v{x+3}")
        e(f"buffer_store_dwordx2 v[32:33], v15, s[8:11], s21 offen offset:{16*g}")
    e("mid_end:")
    e("s_endpgm")

    e(".p2align 8")
    e("fin_kernel:")
    e(f"s_cmp_ge_u32 s2, {N_FIN}")
    e("s_cbranch_scc1 fin_end")
    e("s_load_dwordx2 s[4:5], s[0:1], 128")
    e("s_waitcnt lgkmcnt(0)")
    srd(8, 4, G.WS_REC)
    e("s_lshr_b32 s12, s2, 3")
    e("s_and_b32 s13, s2, 7")
    e("s_mul_i32 s14, s12, 229376")
    e(f"s_add_u32 s14, s14, {G.H_OFF}")
    e("s_mul_i32 s15, s13, 229376")
    e(f"s_add_u32 s15, s15, {G.W2T_OFF}")
    e("v_lshrrev_b32 v1, 4, v0")
    e("v_and_b32 v2, 15, v0")
    e("s_mov_b32 s21, 3584")
    e("v_mul_lo_u32 v3, v1, s21")
    e("v_lshl_add_u32 v3, v2, 4, v3")
    e("v_mul_u32_u24 v4, 272, v1")
    e("v_lshl_add_u32 v4, v2, 4, v4")
    e("v_lshrrev_b32 v5, 6, v0")
    e("v_and_b32 v6, 31, v0")
    e("v_bfe_u32 v7, v0, 5, 1")
    e("v_lshrrev_b32 v8, 1, v5")
    e("v_and_b32 v9, 1, v5")
    e("v_lshl_add_u32 v10, v8, 5, v6")
    e("v_mul_u32_u24 v10, 272, v10")
    e("v_lshl_add_u32 v10, v7, 4, v10")
    e("v_lshl_add_u32 v11, v9, 5, v6")
    e("v_mul_u32_u24 v11, 272, v11")
    e("v_lshl_add_u32 v11, v7, 4, v11")
    e("v_add_u32 v11, 17408, v11")
    ACC = 64
    for i in range(16):
        e(f"v_mov_b32 v{ACC+i}, 0")
    ST = 16; FR = 48
    def floads(c):
        ST = 112 + 32*(c % 4)
        for i in range(4):
            e(f"s_add_u32 s16, s14, {c*256 + i*16*3584}")
            e(f"buffer_load_dwordx4 {vr(ST+4*i,4)}, v3, s[8:11], s16 offen")
        for i in range(4):
            e(f"s_add_u32 s16, s15, {c*256 + i*16*3584}")
            e(f"buffer_load_dwordx4 {vr(ST+16+4*i,4)}, v3, s[8:11], s16 offen")
    def fwrites(b, c):
        ST = 112 + 32*(c % 4)
        for i in range(4):
            e(f"ds_write_b128 v4, {vr(ST+4*i,4)} offset:{b*34816 + i*16*272}")
        for i in range(4):
            e(f"ds_write_b128 v4, {vr(ST+16+4*i,4)} offset:{b*34816 + 17408 + i*16*272}")
    floads(0); floads(1); floads(2); floads(3)
    e("s_waitcnt vmcnt(24)")
    fwrites(0, 0)
    e("s_waitcnt lgkmcnt(0)")
    e("s_barrier")
    for c in range(14):
        b = c & 1
        def frd2(ks):
            o = b*34816 + ks*32; sl = ks & 3
            e(f"ds_read_b128 {vr(80+8*sl,4)}, v10 offset:{o}")
            e(f"ds_read_b128 {vr(84+8*sl,4)}, v11 offset:{o}")
        for ks in range(3): frd2(ks)
        for ks in range(8):
            sl = ks & 3
            if ks + 3 < 8:
                frd2(ks+3)
                e("s_waitcnt lgkmcnt(6)")
            else:
                e(f"s_waitcnt lgkmcnt({2*(7-ks)})")
            e(f"v_mfma_f32_32x32x16_bf16 {vr(ACC,16)}, {vr(80+8*sl,4)}, {vr(84+8*sl,4)}, {vr(ACC,16)}")
        if c < 13:
            e(f"s_waitcnt vmcnt({8*min(2, 12-c)})")
            fwrites(b ^ 1, c+1)
            if c + 4 < 14: floads(c+4)
            e("s_waitcnt lgkmcnt(0)")
            e("s_barrier")
    e("s_nop 15")
    e("s_nop 7")
    e("s_load_dwordx2 s[6:7], s[0:1], 104")
    e("s_load_dwordx2 s[24:25], s[0:1], 0")
    e("s_load_dwordx2 s[26:27], s[0:1], 112")
    e("s_waitcnt lgkmcnt(0)")
    srd(16, 6, 1024)
    srd(28, 24, 2048*1024)
    srd(32, 26, 2048*1024)
    e("s_lshl_b32 s20, s13, 6")
    e("v_lshl_add_u32 v12, v9, 5, v6")
    e("v_add_u32 v12, s20, v12")
    e("v_lshlrev_b32 v13, 1, v12")
    e("buffer_load_ushort v14, v13, s[16:19], 0 offen")
    e("s_lshl_b32 s20, s12, 6")
    e("v_lshlrev_b32 v15, 5, v8")
    e("v_lshl_add_u32 v15, v7, 2, v15")
    e("v_add_u32 v15, s20, v15")
    e("v_lshlrev_b32 v16, 12, v12")
    e("v_lshl_add_u32 v16, v15, 1, v16")
    e("v_lshlrev_b32 v17, 10, v15")
    e("v_add_u32 v17, v17, v13")
    e(f"s_mov_b32 s22, {G.YA_OFF}")
    e("s_waitcnt vmcnt(0)")
    e("v_lshlrev_b32 v14, 16, v14")
    for g in range(4):
        e(f"buffer_load_dwordx2 v[18:19], v16, s[8:11], s22 offen offset:{16*g}")
        for j in range(4):
            e(f"buffer_load_ushort v{20+j}, v17, s[28:31], 0 offen offset:{(8*g+j)*1024}" if (8*g+j)*1024 < 4096 else f"s_nop 0")
        if (8*g)*1024 >= 4096:
            e(f"s_mov_b32 s23, {8*g*1024}")
            for j in range(4):
                e(f"buffer_load_ushort v{20+j}, v17, s[28:31], s23 offen offset:{j*1024}")
        else:
            e(f"s_mov_b32 s23, 0")
        e("s_waitcnt vmcnt(0)")
        x = 24
        for j in range(4):
            e(f"v_mov_b32 v{x+j}, v{ACC+4*g+j}")
            e(f"v_lshlrev_b32 v{20+j}, 16, v{20+j}")
        G.rbf_inplace(x, x+1, 30); G.rbf_inplace(x+2, x+3, 30)
        for j in range(4):
            e(f"v_add_f32 v{x+j}, v{x+j}, v14")
        G.rbf_inplace(x, x+1, 30); G.rbf_inplace(x+2, x+3, 30)
        e("v_lshlrev_b32 v32, 16, v18"); e("v_add_f32 v20, v20, v32")
        e("v_and_b32 v32, 0xffff0000, v18"); e("v_add_f32 v21, v21, v32")
        e("v_lshlrev_b32 v32, 16, v19"); e("v_add_f32 v22, v22, v32")
        e("v_and_b32 v32, 0xffff0000, v19"); e("v_add_f32 v23, v23, v32")
        G.rbf_inplace(20, 21, 30); G.rbf_inplace(22, 23, 30)
        for j in range(4):
            e(f"v_add_f32 v{x+j}, v{x+j}, v{20+j}")
        e(f"v_cvt_pk_bf16_f32 v32, v{x}, v{x+1}")
        e(f"v_cvt_pk_bf16_f32 v33, v{x+2}, v{x+3}")
        off = (lambda j: (8*g+j)*1024 if 8*g*1024 < 4096 else j*1024)
        e(f"buffer_store_short v32, v17, s[32:35], s23 offen offset:{off(0)}")
        e(f"buffer_store_short_d16_hi v32, v17, s[32:35], s23 offen offset:{off(1)}")
        e(f"buffer_store_short v33, v17, s[32:35], s23 offen offset:{off(2)}")
        e(f"buffer_store_short_d16_hi v33, v17, s[32:35], s23 offen offset:{off(3)}")
    e("fin_end:")
    e("s_endpgm")
```

```python
import os
STAMP = bool(os.environ.get('STAMP'))
N_G1, N_CV = 224, 256
N_MID = N_G1 + N_CV
MID_LDS = 73728
MID_VGPR = 240
N_FIN = 256
FIN_LDS = 69632
FIN_VGPR = 240

def emit(G):
    e, vr, srd = G.e, G.vr, G.srd
    GELU_C = 0xc0135761
    e(".p2align 8")
    e("mid_kernel:")
    e(f"s_cmp_ge_u32 s2, {N_MID}")
    e("s_cbranch_scc1 mid_end")
    e("s_load_dwordx2 s[4:5], s[0:1], 128")
    e("s_waitcnt lgkmcnt(0)")
    srd(8, 4, G.WS_REC)
    e(f"s_cmp_ge_u32 s2, {N_G1}")
    e("s_cbranch_scc1 mid_conv")
    e("s_and_b32 s12, s2, 7")
    e("s_lshl_b32 s12, s12, 1")
    e("s_lshr_b32 s13, s2, 3")
    e("s_cmp_ge_u32 s13, 14")
    e("s_cselect_b32 s16, 1, 0")
    e("s_cselect_b32 s17, 14, 0")
    e("s_add_u32 s12, s12, s16")
    e("s_sub_u32 s13, s13, s17")
    e("s_lshl_b32 s14, s12, 17")
    e(f"s_add_u32 s14, s14, {G.Y2_OFF}")
    e("s_lshl_b32 s15, s13, 17")
    e(f"s_add_u32 s15, s15, {G.W1T_OFF}")
    e("v_lshrrev_b32 v1, 3, v0")
    e("v_and_b32 v2, 7, v0")
    e("v_lshlrev_b32 v3, 10, v1")
    e("v_lshl_add_u32 v3, v2, 4, v3")
    e("v_mul_u32_u24 v4, 144, v1")
    e("v_lshl_add_u32 v4, v2, 4, v4")
    e("v_add_u32 v14, 18432, v4")
    e("v_lshrrev_b32 v5, 6, v0")
    e("v_and_b32 v6, 31, v0")
    e("v_bfe_u32 v7, v0, 5, 1")
    e("v_lshrrev_b32 v8, 1, v5")
    e("v_and_b32 v9, 1, v5")
    e("v_lshl_add_u32 v10, v8, 6, v6")
    e("v_mul_u32_u24 v10, 144, v10")
    e("v_lshl_add_u32 v10, v7, 4, v10")
    e("v_lshl_add_u32 v11, v9, 6, v6")
    e("v_mul_u32_u24 v11, 144, v11")
    e("v_lshl_add_u32 v11, v7, 4, v11")
    e("v_add_u32 v11, 18432, v11")
    ACC = 64
    for i in range(64):
        e(f"v_mov_b32 v{ACC+i}, 0")
    ST = 16
    FR = 48
    def loads(c):
        ST = 144 + 32*(c % 3)
        for i in range(4):
            e(f"s_add_u32 s16, s14, {c*128 + i*32768}")
            e(f"buffer_load_dwordx4 {vr(ST+4*i,4)}, v3, s[8:11], s16 offen")
        for i in range(4):
            e(f"s_add_u32 s16, s15, {c*128 + i*32768}")
            e(f"buffer_load_dwordx4 {vr(ST+16+4*i,4)}, v3, s[8:11], s16 offen")
    def writes(b, c):
        ST = 144 + 32*(c % 3)
        for i in range(4):
            e(f"ds_write_b128 v4, {vr(ST+4*i,4)} offset:{b*36864 + i*32*144}")
        for i in range(4):
            e(f"ds_write_b128 v14, {vr(ST+16+4*i,4)} offset:{b*36864 + i*32*144}")
    loads(0); loads(1); loads(2)
    e("s_waitcnt vmcnt(16)")
    writes(0, 0)
    e("s_waitcnt lgkmcnt(0)")
    e("s_barrier")
    for c in range(8):
        b = c & 1
        def frd(ks):
            o = b*36864 + ks*32; F = FR + 128*(ks & 1) if False else (FR if (ks & 1) == 0 else 128)
            e(f"ds_read_b128 {vr(F,4)}, v10 offset:{o}")
            e(f"ds_read_b128 {vr(F+4,4)}, v10 offset:{o+32*144}")
            e(f"ds_read_b128 {vr(F+8,4)}, v11 offset:{o}")
            e(f"ds_read_b128 {vr(F+12,4)}, v11 offset:{o+32*144}")
        frd(0)
        for ks in range(4):
            F = FR if (ks & 1) == 0 else 128
            if ks < 3:
                frd(ks+1)
                e("s_waitcnt lgkmcnt(4)")
            else:
                e("s_waitcnt lgkmcnt(0)")
            for nt in range(2):
                for mt in range(2):
                    a = ACC + 16*(2*nt+mt)
                    e(f"v_mfma_f32_32x32x16_bf16 {vr(a,16)}, {vr(F+8+4*nt,4)}, {vr(F+4*mt,4)}, {vr(a,16)}")
            if ks == 1 and c < 7:
                e(f"s_waitcnt vmcnt({8*min(1, 6-c)})")
                writes(b ^ 1, c+1)
        if c < 7:
            if c + 3 < 8: loads(c+3)
            e("s_waitcnt lgkmcnt(0)")
            e("s_barrier")
    e("s_nop 15")
    e("s_nop 7")
    e("s_load_dwordx2 s[6:7], s[0:1], 88")
    e("s_waitcnt lgkmcnt(0)")
    srd(16, 6, 1792*2)
    e("s_lshl_b32 s20, s13, 8")
    e("v_lshlrev_b32 v12, 7, v9")
    e("v_lshl_add_u32 v12, v7, 3, v12")
    e("v_add_u32 v12, s20, v12")
    e("v_lshl_add_u32 v13, v8, 6, v6")
    e("s_mov_b32 s21, 3584")
    e("v_mul_lo_u32 v13, v13, s21")
    e("v_add_u32 v13, v13, v12")
    e("s_mul_i32 s22, s12, 458752")
    e(f"s_add_u32 s22, s22, {G.H_OFF}")
    for nt in range(2):
        for g in range(4):
            e(f"buffer_load_dwordx2 {vr(16+2*g,2)}, v12, s[16:19], 0 offen offset:{nt*64+g*16}")
        e("s_waitcnt vmcnt(0)")
        for mt in range(2):
            a = ACC + 16*(2*nt+mt)
            for g in range(4):
                x = 24
                for j in range(4):
                    e(f"v_mov_b32 v{x+j}, v{a+4*g+j}")
                G.rbf_inplace(x, x+1, 30); G.rbf_inplace(x+2, x+3, 30)
                e(f"v_lshlrev_b32 v28, 16, v{16+2*g}")
                e(f"v_add_f32 v{x}, v{x}, v28")
                e(f"v_and_b32 v28, 0xffff0000, v{16+2*g}")
                e(f"v_add_f32 v{x+1}, v{x+1}, v28")
                e(f"v_lshlrev_b32 v28, 16, v{17+2*g}")
                e(f"v_add_f32 v{x+2}, v{x+2}, v28")
                e(f"v_and_b32 v28, 0xffff0000, v{17+2*g}")
                e(f"v_add_f32 v{x+3}, v{x+3}, v28")
                G.rbf_inplace(x, x+1, 30); G.rbf_inplace(x+2, x+3, 30)
                for j in range(4):
                    v = x + j
                    e(f"v_mul_f32 v28, v{v}, v{v}")
                    e(f"v_mul_f32 v28, 0x3d372713, v28")
                    e(f"v_fma_f32 v28, v28, v{v}, v{v}")
                    e(f"v_mul_f32 v28, {GELU_C}, v28")
                    e(f"v_exp_f32 v28, v28")
                    e("s_nop 0")
                    e(f"v_add_f32 v28, 1.0, v28")
                    e(f"v_rcp_f32 v28, v28")
                    e("s_nop 0")
                    e(f"v_mul_f32 v{v}, v{v}, v28")
                e(f"v_cvt_pk_bf16_f32 v32, v{x}, v{x+1}")
                e(f"v_cvt_pk_bf16_f32 v33, v{x+2}, v{x+3}")
                e(f"s_add_u32 s23, s22, {mt*32*3584}")
                e(f"buffer_store_dwordx2 v[32:33], v13, s[8:11], s23 offen offset:{nt*64+g*16}")
    e("s_branch mid_end")
    UREG = 9088; KB = 2*UREG; KCP = 4240; KREG = 4*KCP
    e("mid_conv:")
    e(f"s_sub_u32 s3, s2, {N_G1}")
    e("s_load_dwordx2 s[6:7], s[0:1], 64")
    e("v_mov_b32 v8, 0"); e("v_mov_b32 v9, 0"); e("v_mov_b32 v10, 0"); e("v_mov_b32 v11, 0")
    e("v_lshlrev_b32 v1, 4, v0")
    for c in range(2):
        e(f"ds_write_b128 v1, v[8:11] offset:{c*UREG}")
        e("v_cmp_gt_u32 vcc, 24, v0")
        e("s_and_saveexec_b64 s[20:21], vcc")
        e(f"ds_write_b128 v1, v[8:11] offset:{c*UREG + 4096}")
        e("s_mov_b64 exec, s[20:21]")
    for i in range(8):
        e(f"ds_write_b128 v1, v[8:11] offset:{KB + 4096*i}")
    e("v_cmp_gt_u32 vcc, 72, v0")
    e("s_and_saveexec_b64 s[20:21], vcc")
    e(f"ds_write_b128 v1, v[8:11] offset:{KB + 4096*8}")
    e("s_mov_b64 exec, s[20:21]")
    e("s_waitcnt lgkmcnt(0)")
    e("s_barrier")
    e("s_lshl_b32 s12, s3, 5")
    e(f"s_add_u32 s12, s12, {G.XNT_OFF}")
    e("v_lshlrev_b32 v2, 13, v0")
    e("buffer_load_dwordx4 v[12:15], v2, s[8:11], s12 offen")
    e("buffer_load_dwordx4 v[16:19], v2, s[8:11], s12 offen offset:16")
    e("v_lshrrev_b32 v3, 3, v0")
    e("v_add_u32 v3, 31, v3")
    e("v_mul_u32_u24 v3, 144, v3")
    e("v_and_b32 v4, 7, v0")
    e("v_lshl_add_u32 v3, v4, 4, v3")
    e("s_waitcnt vmcnt(0)")
    e("ds_write_b128 v3, v[12:15]")
    e(f"ds_write_b128 v3, v[16:19] offset:{UREG}")
    e(f"s_mul_i32 s13, s3, {2*G.KC_PITCH}")
    e(f"s_add_u32 s13, s13, {G.KC_OFF}")
    for i in range(8):
        e(f"v_add_u32 v5, {256*i}, v0")
        e("v_cvt_f32_u32 v6, v5")
        e("v_cvt_pk_bf16_f32 v6, v6, v6")
        e("v_and_b32 v6, 0xffff, v6")
        e("v_subrev_u32 v6, 17024, v6")
        e("v_cmp_gt_u32 vcc, 256, v5")
        e("s_nop 1")
        e("v_cndmask_b32 v6, v6, v5, vcc")
        e("v_lshlrev_b32 v6, 2, v6")
        e(f"buffer_load_dword v{20+2*i}, v6, s[8:11], s13 offen")
        e(f"buffer_load_dword v{21+2*i}, v6, s[8:11], s13 offen offset:{G.KC_PITCH}")
    e("s_waitcnt vmcnt(0)")
    e("v_lshlrev_b32 v7, 1, v0")
    e("v_sub_u32 v7, 4094, v7")
    for i in range(8):
        e(f"v_cvt_pk_bf16_f32 v5, v{20+2*i}, v{21+2*i}")
        e(f"ds_write_b16 v7, v5 offset:{KB + 4096 - 512*i - 4096 + 0}" if False else f"v_subrev_u32 v6, {512*i}, v7")
        for cc in range(4):
            e(f"ds_write_b16 v6, v5 offset:{KB + cc*KCP + 8 - 2*cc}")
            e(f"ds_write_b16_d16_hi v6, v5 offset:{KB + KREG + cc*KCP + 8 - 2*cc}")
    e("s_waitcnt lgkmcnt(0)")
    e("s_barrier")
    e("v_lshrrev_b32 v5, 6, v0")
    e("v_lshrrev_b32 v8, 1, v5")
    e("v_and_b32 v9, 1, v5")
    e("v_and_b32 v6, 31, v0")
    e("v_bfe_u32 v7, v0, 5, 1")
    e("v_lshlrev_b32 v10, 5, v9")
    e("v_add_u32 v10, v10, v6")
    e("v_sub_u32 v10, 63, v10")
    e("v_lshl_add_u32 v10, v7, 3, v10")
    e("v_and_b32 v13, 3, v10")
    e("v_and_b32 v10, -4, v10")
    e("v_lshlrev_b32 v10, 1, v10")
    e(f"v_mul_u32_u24 v13, {KCP}, v13")
    e("v_add3_u32 v10, v10, v13, 8")
    e(f"v_mul_u32_u24 v12, {KREG}, v8")
    e("v_add_u32 v10, v10, v12")
    e(f"v_add_u32 v10, {KB}, v10")
    e("v_mul_u32_u24 v11, 144, v6")
    e("v_lshl_add_u32 v11, v7, 4, v11")
    e(f"v_mul_u32_u24 v12, {UREG}, v8")
    e("v_add_u32 v11, v11, v12")
    ACC = 64
    for i in range(16):
        e(f"v_mov_b32 v{ACC+i}, 0")
    steps = [(m, j0) for m in range(32) for j0 in (0, 16, 32, 48)]
    def rd(k, slot):
        m, j0 = steps[k]
        e(f"ds_read_b64 {vr(16+8*slot,2)}, v10 offset:{2*(64*(31-m)+j0)}")
        e(f"ds_read_b64 {vr(18+8*slot,2)}, v10 offset:{2*(64*(31-m)+j0)+8}")
        e(f"ds_read_b128 {vr(20+8*slot,4)}, v11 offset:{(31-m)*144 + 2*j0}")
    NS = 4
    for k in range(NS-1): rd(k, k)
    for k in range(len(steps)):
        if k + NS - 1 < len(steps):
            rd(k+NS-1, (k+NS-1) % NS)
            e(f"s_waitcnt lgkmcnt({3*(NS-1)})")
        else:
            e(f"s_waitcnt lgkmcnt({3*(len(steps)-1-k)})")
        s = k % NS
        e(f"v_mfma_f32_32x32x16_bf16 {vr(ACC,16)}, {vr(16+8*s,4)}, {vr(20+8*s,4)}, {vr(ACC,16)}")
    e("s_nop 15")
    e("s_nop 7")
    e("s_waitcnt lgkmcnt(0)")
    srd(16, 6, 1024)
    e("s_lshl_b32 s20, s3, 2")
    e("v_lshlrev_b32 v13, 1, v8")
    e("v_add_u32 v13, s20, v13")
    e("buffer_load_ushort v13, v13, s[16:19], 0 offen")
    e("v_mul_u32_u24 v14, 144, v6")
    e("v_add_u32 v14, v14, v12")
    e("v_lshl_add_u32 v14, v9, 6, v14")
    e("v_lshl_add_u32 v14, v7, 3, v14")
    e("v_lshlrev_b32 v15, 7, v6")
    e("v_lshl_add_u32 v15, v9, 6, v15")
    e("v_lshl_add_u32 v15, v7, 3, v15")
    e("v_lshl_add_u32 v15, v8, 12, v15")
    e("s_lshl_b32 s21, s3, 13")
    e(f"s_add_u32 s21, s21, {G.YA_OFF}")
    e("s_waitcnt vmcnt(0)")
    e("v_lshlrev_b32 v13, 16, v13")
    for g in range(4):
        e(f"ds_read_b64 v[16:17], v14 offset:{31*144 + 16*g}")
        e("s_waitcnt lgkmcnt(0)")
        x = 24
        e("v_lshlrev_b32 v20, 16, v16"); e("v_and_b32 v21, 0xffff0000, v16")
        e("v_lshlrev_b32 v22, 16, v17"); e("v_and_b32 v23, 0xffff0000, v17")
        for j in range(4):
            e(f"v_mul_f32 v{20+j}, v{20+j}, v13")
            e(f"v_mov_b32 v{x+j}, v{ACC+4*g+j}")
        G.rbf_inplace(20, 21, 30); G.rbf_inplace(22, 23, 30)
        G.rbf_inplace(x, x+1, 30); G.rbf_inplace(x+2, x+3, 30)
        for j in range(4):
            e(f"v_add_f32 v{x+j}, v{x+j}, v{20+j}")
        e(f"v_cvt_pk_bf16_f32 v32, v{x}, v{x+1}")
        e(f"v_cvt_pk_bf16_f32 v33, v{x+2}, v{x+3}")
        e(f"buffer_store_dwordx2 v[32:33], v15, s[8:11], s21 offen offset:{16*g}")
    e("mid_end:")
    e("s_endpgm")

    e(".p2align 8")
    e("fin_kernel:")
    e(f"s_cmp_ge_u32 s2, {N_FIN}")
    e("s_cbranch_scc1 fin_end")
    e("s_load_dwordx2 s[4:5], s[0:1], 128")
    e("s_waitcnt lgkmcnt(0)")
    srd(8, 4, G.WS_REC)
    if STAMP: e("s_memtime s[40:41]")
    e("s_and_b32 s12, s2, 7")
    e("s_lshl_b32 s12, s12, 2")
    e("s_lshr_b32 s13, s2, 6")
    e("s_add_u32 s12, s12, s13")
    e("s_bfe_u32 s13, s2, 0x30003")
    e("s_mul_i32 s14, s12, 229376")
    e(f"s_add_u32 s14, s14, {G.H_OFF}")
    e("s_mul_i32 s15, s13, 229376")
    e(f"s_add_u32 s15, s15, {G.W2T_OFF}")
    e("v_lshrrev_b32 v1, 4, v0")
    e("v_and_b32 v2, 15, v0")
    e("s_mov_b32 s21, 3584")
    e("v_mul_lo_u32 v3, v1, s21")
    e("v_lshl_add_u32 v3, v2, 4, v3")
    e("v_mul_u32_u24 v4, 272, v1")
    e("v_lshl_add_u32 v4, v2, 4, v4")
    e("v_lshrrev_b32 v5, 6, v0")
    e("v_and_b32 v6, 31, v0")
    e("v_bfe_u32 v7, v0, 5, 1")
    e("v_lshrrev_b32 v8, 1, v5")
    e("v_and_b32 v9, 1, v5")
    e("v_lshl_add_u32 v10, v8, 5, v6")
    e("v_mul_u32_u24 v10, 272, v10")
    e("v_lshl_add_u32 v10, v7, 4, v10")
    e("v_lshl_add_u32 v11, v9, 5, v6")
    e("v_mul_u32_u24 v11, 272, v11")
    e("v_lshl_add_u32 v11, v7, 4, v11")
    e("v_add_u32 v11, 17408, v11")
    ACC = 64
    for i in range(16):
        e(f"v_mov_b32 v{ACC+i}, 0")
    ST = 16; FR = 48
    def floads(c):
        ST = 112 + 32*(c % 4)
        for i in range(4):
            e(f"s_add_u32 s16, s14, {c*256 + i*16*3584}")
            e(f"buffer_load_dwordx4 {vr(ST+4*i,4)}, v3, s[8:11], s16 offen")
        for i in range(4):
            e(f"s_add_u32 s16, s15, {c*256 + i*16*3584}")
            e(f"buffer_load_dwordx4 {vr(ST+16+4*i,4)}, v3, s[8:11], s16 offen")
    def fwrites(b, c):
        ST = 112 + 32*(c % 4)
        for i in range(4):
            e(f"ds_write_b128 v4, {vr(ST+4*i,4)} offset:{b*34816 + i*16*272}")
        for i in range(4):
            e(f"ds_write_b128 v4, {vr(ST+16+4*i,4)} offset:{b*34816 + 17408 + i*16*272}")
    e("s_load_dwordx2 s[6:7], s[0:1], 104")
    e("s_load_dwordx2 s[24:25], s[0:1], 0")
    e("s_load_dwordx2 s[26:27], s[0:1], 112")
    e("s_waitcnt lgkmcnt(0)")
    srd(16, 6, 1024)
    srd(28, 24, 2048*1024)
    srd(32, 26, 2048*1024)
    e("s_lshl_b32 s20, s13, 6")
    e("v_lshl_add_u32 v12, v9, 5, v6")
    e("v_add_u32 v12, s20, v12")
    e("v_lshlrev_b32 v13, 1, v12")
    e("buffer_load_ushort v14, v13, s[16:19], 0 offen")
    e("s_lshl_b32 s20, s12, 6")
    e("v_lshlrev_b32 v15, 5, v8")
    e("v_lshl_add_u32 v15, v7, 2, v15")
    e("v_add_u32 v15, s20, v15")
    e("v_lshlrev_b32 v16, 12, v12")
    e("v_lshl_add_u32 v16, v15, 1, v16")
    e("v_lshlrev_b32 v17, 10, v15")
    e("v_add_u32 v17, v17, v13")
    e(f"s_mov_b32 s22, {G.YA_OFF}")
    for g in range(4):
        e(f"buffer_load_dwordx2 {vr(48+2*g,2)}, v16, s[8:11], s22 offen offset:{16*g}")
        e(f"s_mov_b32 s23, {8*g*1024}")
        for j in range(4):
            e(f"buffer_load_ushort v{32+4*g+j}, v17, s[28:31], s23 offen offset:{j*1024}")
    floads(0); floads(1); floads(2); floads(3)
    e("s_waitcnt vmcnt(24)")
    fwrites(0, 0)
    e("s_waitcnt lgkmcnt(0)")
    e("s_barrier")
    if STAMP: e("s_memtime s[42:43]")
    for c in range(14):
        b = c & 1
        def frd2(ks):
            o = b*34816 + ks*32; sl = ks & 3
            e(f"ds_read_b128 {vr(80+8*sl,4)}, v10 offset:{o}")
            e(f"ds_read_b128 {vr(84+8*sl,4)}, v11 offset:{o}")
        for ks in range(3): frd2(ks)
        for ks in range(8):
            sl = ks & 3
            if ks + 3 < 8:
                frd2(ks+3)
                e("s_waitcnt lgkmcnt(6)")
            else:
                e(f"s_waitcnt lgkmcnt({2*(7-ks)})")
            e(f"v_mfma_f32_32x32x16_bf16 {vr(ACC,16)}, {vr(80+8*sl,4)}, {vr(84+8*sl,4)}, {vr(ACC,16)}")
            if ks == 5 and c < 13:
                e(f"s_waitcnt vmcnt({8*min(2, 12-c)})")
                fwrites(b ^ 1, c+1)
        if c < 13:
            if c + 4 < 14: floads(c+4)
            e("s_waitcnt lgkmcnt(0)")
            e("s_barrier")
    e("s_nop 15")
    e("s_nop 7")
    if STAMP: e("s_memtime s[44:45]")
    e("v_lshlrev_b32 v14, 16, v14")
    for g in range(4):
        x = 24
        for j in range(4):
            e(f"v_mov_b32 v{x+j}, v{ACC+4*g+j}")
            e(f"v_lshlrev_b32 v{20+j}, 16, v{32+4*g+j}")
        G.rbf_inplace(x, x+1, 30); G.rbf_inplace(x+2, x+3, 30)
        for j in range(4):
            e(f"v_add_f32 v{x+j}, v{x+j}, v14")
        G.rbf_inplace(x, x+1, 30); G.rbf_inplace(x+2, x+3, 30)
        e(f"v_lshlrev_b32 v31, 16, v{48+2*g}"); e("v_add_f32 v20, v20, v31")
        e(f"v_and_b32 v31, 0xffff0000, v{48+2*g}"); e("v_add_f32 v21, v21, v31")
        e(f"v_lshlrev_b32 v31, 16, v{49+2*g}"); e("v_add_f32 v22, v22, v31")
        e(f"v_and_b32 v31, 0xffff0000, v{49+2*g}"); e("v_add_f32 v23, v23, v31")
        G.rbf_inplace(20, 21, 30); G.rbf_inplace(22, 23, 30)
        for j in range(4):
            e(f"v_add_f32 v{x+j}, v{x+j}, v{20+j}")
        e(f"v_cvt_pk_bf16_f32 v{56+2*g}, v{x}, v{x+1}")
        e(f"v_cvt_pk_bf16_f32 v{57+2*g}, v{x+2}, v{x+3}")
        e(f"s_mov_b32 s23, {8*g*1024}")
        e(f"buffer_store_short v{56+2*g}, v17, s[32:35], s23 offen offset:0")
        e(f"buffer_store_short_d16_hi v{56+2*g}, v17, s[32:35], s23 offen offset:1024")
        e(f"buffer_store_short v{57+2*g}, v17, s[32:35], s23 offen offset:2048")
        e(f"buffer_store_short_d16_hi v{57+2*g}, v17, s[32:35], s23 offen offset:3072")
    if STAMP:
        e("s_waitcnt vmcnt(0)")
        e("s_memtime s[46:47]")
        e("s_load_dwordx2 s[48:49], s[0:1], 120")
        e("s_waitcnt lgkmcnt(0)")
        srd(52, 48, 256)
        e("s_cmp_lg_u32 s2, 9")
        e("s_cbranch_scc1 fin_end")
        e("v_cmp_eq_u32 vcc, 0, v0")
        e("s_and_saveexec_b64 s[56:57], vcc")
        e("s_cbranch_execz fin_end")
        for i in range(4):
            e(f"s_sub_u32 s58, s{40+2*i}, s40")
            e(f"v_mov_b32 v1, s58")
            e(f"v_mov_b32 v2, {4*i}")
            e("buffer_store_dword v1, v2, s[52:55], 0 offen")
    e("fin_end:")
    e("s_endpgm")
```

```python
import sys
NAME = "parallel_sum__ssm_conv_s4__mixer_channel_mlp__prompt"

Y2_OFF = 0
XNT_OFF = 2 << 20
W1T_OFF = 4 << 20
W2T_OFF = 6 << 20
KC_OFF = 8 << 20
KC_PITCH = 672 * 4
H_OFF = 10 << 20
YA_OFF = 18 << 20
WS_REC = 32 << 20

L = []
def e(s=""):
    L.append(s)

def vr(a, n):
    return f"v[{a}:{a+n-1}]"
def sr(a, n):
    return f"s[{a}:{a+n-1}]"

def srd(sd, sbase, nbytes):
    e(f"s_mov_b32 s{sd}, s{sbase}")
    e(f"s_and_b32 s{sd+1}, s{sbase+1}, 0xffff")
    e(f"s_mov_b32 s{sd+2}, {nbytes}")
    e(f"s_mov_b32 s{sd+3}, 0x00020000")

def round_pair(dst_pk, a, b):
    e(f"v_cvt_pk_bf16_f32 v{dst_pk}, v{a}, v{b}")

def rbf_inplace(a, b, tmp):
    e(f"v_cvt_pk_bf16_f32 v{tmp}, v{a}, v{b}")
    e(f"v_lshlrev_b32 v{a}, 16, v{tmp}")
    e(f"v_and_b32 v{b}, 0xffff0000, v{tmp}")

def reduce32(v, t, t2):
    for r in (8, 4, 2, 1):
        e("s_nop 1")
        e(f"v_add_f32_dpp v{t}, v{v}, v{v} row_ror:{r} row_mask:0xf bank_mask:0xf")
        v, t = t, v
    e("s_nop 1")
    e(f"ds_swizzle_b32 v{t2}, v{v} offset:0x401F")
    e("s_waitcnt lgkmcnt(0)")
    e(f"v_add_f32 v{v}, v{v}, v{t2}")
    return v

LOG2E = 0x3fb8aa3b
INV2PI = 0x3e22f983

N_LN, N_KG, N_TR = 256, 512, 448
N_PREP = N_LN + N_KG + N_TR

def layernorm_regs(X, tmpA, tmpB, tmpC):
    s = tmpA
    e(f"v_add_f32 v{s}, v{X}, v{X+1}")
    for i in range(2, 16):
        e(f"v_add_f32 v{s}, v{s}, v{X+i}")
    s = reduce32(s, tmpB, tmpC)
    mean = s
    e(f"v_mul_f32 v{mean}, 0x3b000000, v{mean}")
    q = tmpA if mean != tmpA else tmpB
    other = [t for t in (tmpA, tmpB, tmpC) if t not in (mean, q)][0]
    e(f"v_sub_f32 v{q}, v{X}, v{mean}")
    e(f"v_mul_f32 v{q}, v{q}, v{q}")
    for i in range(1, 16):
        e(f"v_sub_f32 v{other}, v{X+i}, v{mean}")
        e(f"v_fmac_f32 v{q}, v{other}, v{other}")
    T3 = 62; T4 = 63
    q = reduce32(q, T3, T4)
    e(f"v_mul_f32 v{q}, 0x3b000000, v{q}")
    rbf_inplace(mean, q, T4)
    e(f"v_add_f32 v{q}, 0x3727c5ac, v{q}")
    e(f"v_cvt_pk_bf16_f32 v{T4}, v{q}, v{q}")
    e(f"v_lshlrev_b32 v{q}, 16, v{T4}")
    e(f"v_sqrt_f32 v{q}, v{q}")
    e("s_nop 0")
    e(f"v_cvt_pk_bf16_f32 v{T4}, v{q}, v{q}")
    e(f"v_lshlrev_b32 v{q}, 16, v{T4}")
    e(f"v_rcp_f32 v{q}, v{q}")
    e("s_nop 0")
    for i in range(0, 16, 2):
        e(f"v_sub_f32 v{X+i}, v{X+i}, v{mean}")
        e(f"v_sub_f32 v{X+i+1}, v{X+i+1}, v{mean}")
        rbf_inplace(X+i, X+i+1, T4)
        e(f"v_mul_f32 v{X+i}, v{X+i}, v{q}")
        e(f"v_mul_f32 v{X+i+1}, v{X+i+1}, v{q}")
        rbf_inplace(X+i, X+i+1, T4)

def prep_kernel():
    e(".p2align 8")
    e("prep_kernel:")
    e(f"s_cmp_ge_u32 s2, {N_PREP}")
    e("s_cbranch_scc1 prep_end")
    e("s_load_dwordx2 s[4:5], s[0:1], 128")
    e("s_waitcnt lgkmcnt(0)")
    srd(8, 4, WS_REC)
    e(f"s_cmp_ge_u32 s2, {N_LN}")
    e("s_cbranch_scc1 prep_not_ln")
    e("s_load_dwordx2 s[6:7], s[0:1], 0")
    e("s_waitcnt lgkmcnt(0)")
    srd(12, 6, 2048*512*2)
    e("v_lshrrev_b32 v1, 5, v0")
    e("v_and_b32 v2, 31, v0")
    e("v_lshlrev_b32 v3, 10, v1")
    e("v_lshl_add_u32 v3, v2, 5, v3")
    e("s_lshl_b32 s3, s2, 13")
    e("v_add_u32 v4, s3, v3")
    e("buffer_load_dwordx4 v[8:11], v4, s[12:15], 0 offen")
    e("buffer_load_dwordx4 v[12:15], v4, s[12:15], 0 offen offset:16")
    e("s_waitcnt vmcnt(0)")
    X = 16
    for i in range(8):
        e(f"v_lshlrev_b32 v{X+2*i}, 16, v{8+i}")
        e(f"v_and_b32 v{X+2*i+1}, 0xffff0000, v{8+i}")
    layernorm_regs(X, 40, 41, 42)
    for i in range(8):
        e(f"v_cvt_pk_bf16_f32 v{8+i}, v{X+2*i}, v{X+2*i+1}")
    e("ds_write_b128 v3, v[8:11]")
    e("ds_write_b128 v3, v[12:15] offset:16")
    layernorm_regs(X, 40, 41, 42)
    for i in range(8):
        e(f"v_cvt_pk_bf16_f32 v{8+i}, v{X+2*i}, v{X+2*i+1}")
    e(f"buffer_store_dwordx4 v[8:11], v4, s[8:11], 0 offen")
    e(f"buffer_store_dwordx4 v[12:15], v4, s[8:11], 0 offen offset:16")
    e("s_waitcnt lgkmcnt(0)")
    e("s_barrier")
    for half in range(2):
        e(f"v_lshlrev_b32 v5, 1, v0")
        for r in range(8):
            e(f"ds_read_u16 v{16+r}, v5 offset:{r*1024 + half*512}")
        e("s_waitcnt lgkmcnt(0)")
        for r in range(4):
            e(f"v_lshl_or_b32 v{24+r}, v{16+2*r+1}, 16, v{16+2*r}")
        e(f"v_lshlrev_b32 v6, 4, v0")
        e(f"s_add_u32 s16, s3, {XNT_OFF + half*4096}")
        e(f"buffer_store_dwordx4 v[24:27], v6, s[8:11], s16 offen")
        e("s_nop 1")
    e("s_branch prep_end")
    e("prep_not_ln:")
    e(f"s_cmp_ge_u32 s2, {N_LN + N_KG}")
    e("s_cbranch_scc1 prep_trans")
    kgen()
    e("s_branch prep_end")
    e("prep_trans:")
    trans()
    e("prep_end:")
    e("s_endpgm")

def kgen():
    global e
    e(f"s_sub_u32 s3, s2, {N_LN}")
    e("s_load_dwordx8 s[16:23], s[0:1], 8")
    e("s_load_dwordx4 s[24:27], s[0:1], 40")
    e("s_load_dwordx2 s[28:29], s[0:1], 56")
    e("v_lshrrev_b32 v1, 6, v0")
    e("v_and_b32 v2, 15, v0")
    e("v_bfe_u32 v3, v0, 4, 2")
    e("s_lshl_b32 s30, s3, 8")
    e("v_and_b32 v4, 127, v0")
    e("v_lshlrev_b32 v4, 1, v4")
    e("v_add_u32 v4, s30, v4")
    e("s_waitcnt lgkmcnt(0)")
    srd(32, 28, 1024)
    e("s_lshl_b32 s31, s3, 1")
    e("v_mov_b32 v5, s31")
    e("buffer_load_ushort v5, v5, s[32:35], 0 offen")
    for ai in range(6):
        srd(40 + 4*ai, 16 + 2*ai, 512*128*2)
    for ai in range(6):
        e(f"buffer_load_ushort v{24+ai}, v4, {sr(40+4*ai,4)}, 0 offen")
    e("s_waitcnt vmcnt(0)")
    e("v_lshlrev_b32 v5, 16, v5")
    e(f"v_mul_f32 v5, {LOG2E}, v5")
    e("v_exp_f32 v5, v5")
    e("s_nop 0")
    e("v_cvt_pk_bf16_f32 v5, v5, v5")
    e("v_lshlrev_b32 v5, 16, v5")
    for ai in range(6):
        e(f"v_lshlrev_b32 v{24+ai}, 16, v{24+ai}")
    e("v_mul_f32 v24, v24, v5"); e("v_mul_f32 v25, v25, v5"); e("v_mul_f32 v26, v26, v5"); e("v_mul_f32 v27, v27, v5")
    e(f"v_mul_f32 v32, {LOG2E}, v24")
    e(f"v_mul_f32 v33, {INV2PI}, v25")
    e("v_mul_f32 v34, v28, v26")
    e("v_fma_f32 v34, -v29, v27, v34")
    e("v_mul_f32 v35, v28, v27")
    e("v_fma_f32 v35, v29, v26, v35")
    e("v_and_b32 v6, 127, v0")
    e("v_lshlrev_b32 v6, 4, v6")
    e("ds_write_b128 v6, v[32:35]")
    e("s_waitcnt lgkmcnt(0)")
    e("s_barrier")
    e("v_cvt_f32_u32 v6, v2")
    e("v_lshlrev_b32 v7, v1, 1")
    e("v_cvt_f32_u32 v7, v7")
    e("v_mul_f32 v8, v6, v7")
    e("v_mul_f32 v9, 16.0, v8")
    e("v_mul_f32 v10, 0x43000000, v7")
    e("v_cmp_eq_u32 vcc, 0, v1")
    e("s_nop 1")
    e("v_cndmask_b32 v10, v10, 0, vcc")
    e("v_add_f32 v9, v9, v10")
    e("v_lshlrev_b32 v11, 9, v3")
    e("v_mov_b32 v12, 0"); e("v_mov_b32 v13, 0"); e("v_mov_b32 v14, 0"); e("v_mov_b32 v15, 0")
    AF, BF = 16, 20
    PB = 64
    for q in range(8):
        if q % 4 == 0:
            for n in range(16):
                e(f"ds_read_b128 {vr(PB+4*n,4)}, v11 offset:{16*(4*q+n)}")
            e("s_waitcnt lgkmcnt(0)")
        streams = []
        for ee in range(4):
            cur = []; streams.append(cur); ap = cur.append
            n = 4*q + ee
            n %= 16
            a2, b2, Wr, Wi = PB+4*n, PB+4*n+1, PB+4*n+2, PB+4*n+3
            t = 24 + 8*ee
            def cexp(R, outr, outi, tm):
                ap(f"v_mul_f32 v{tm}, v{a2}, v{R}")
                ap(f"v_exp_f32 v{tm}, v{tm}")
                ap(f"v_mul_f32 v{tm+1}, v{b2}, v{R}")
                ap(f"v_fract_f32 v{tm+1}, v{tm+1}")
                ap(f"v_cos_f32 v{outr}, v{tm+1}")
                ap(f"v_sin_f32 v{outi}, v{tm+1}")
                ap(f"v_mul_f32 v{outr}, v{outr}, v{tm}")
                ap(f"v_mul_f32 v{outi}, v{outi}, v{tm}")
            cexp(8, t, t+1, t+2)
            ap(f"v_cvt_pk_bf16_f32 v{BF+ee}, v{t}, v{t+1}")
            cexp(9, t, t+1, t+2)
            ap(f"v_mul_f32 v{t+4}, v{Wr}, v{t}")
            ap(f"v_fma_f32 v{t+4}, -v{Wi}, v{t+1}, v{t+4}")
            ap(f"v_mul_f32 v{t+5}, v{Wr}, v{t+1}")
            ap(f"v_fma_f32 v{t+5}, v{Wi}, v{t}, v{t+5}")
            ap(f"v_cvt_pk_bf16_f32 v{AF+ee}, v{t+4}, -v{t+5}")
        for i in range(max(len(x) for x in streams)):
            for x in streams:
                if i < len(x): e(x[i])
        e("s_nop 1")
        e(f"v_mfma_f32_16x16x32_bf16 v[12:15], {vr(AF,4)}, {vr(BF,4)}, v[12:15]")
        e("s_nop 3")
    e("s_nop 7")
    e("v_lshlrev_b32 v16, 7, v1")
    e("v_add_u32 v16, 128, v16")
    e("v_cmp_eq_u32 vcc, 0, v1")
    e("s_nop 1")
    e("v_cndmask_b32 v16, v16, 0, vcc")
    e("v_lshl_add_u32 v16, v3, 6, v16")
    e("v_add_u32 v16, v16, v2")
    e("v_lshlrev_b32 v16, 2, v16")
    e(f"s_mul_i32 s30, s3, {KC_PITCH}")
    e(f"s_add_u32 s30, s30, {KC_OFF}")
    e("v_cmp_gt_u32 vcc, 2, v3")
    e("v_cmp_eq_u32 s[36:37], 0, v1")
    e("s_or_b64 s[36:37], s[36:37], vcc")
    e("v_cmp_eq_u32 vcc, 3, v1")
    e("v_cmp_eq_u32 s[38:39], 2, v3")
    e("s_and_b64 s[38:39], s[38:39], vcc")
    e("s_or_b64 s[38:39], s[38:39], s[36:37]")
    e("s_mov_b64 exec, s[38:39]")
    e("buffer_store_dword v12, v16, s[8:11], s30 offen")
    e("s_mov_b64 exec, s[36:37]")
    e("buffer_store_dword v13, v16, s[8:11], s30 offen offset:64")
    e("buffer_store_dword v14, v16, s[8:11], s30 offen offset:128")
    e("buffer_store_dword v15, v16, s[8:11], s30 offen offset:192")
    e("s_mov_b64 exec, -1")

def trans():
    e(f"s_sub_u32 s3, s2, {N_LN + N_KG}")
    e("s_load_dwordx2 s[6:7], s[0:1], 80")
    e("s_load_dwordx2 s[16:17], s[0:1], 96")
    e("s_waitcnt lgkmcnt(0)")
    e("s_cmp_ge_u32 s3, 224")
    e("s_cbranch_scc1 tr_w2")
    e("s_mul_i32 s18, s3, 9363")
    e("s_lshr_b32 s18, s18, 18")
    e("s_mul_i32 s19, s18, 28")
    e("s_sub_u32 s19, s3, s19")
    e("s_mov_b32 s20, 3584")
    e("s_mov_b32 s21, 1024")
    e(f"s_mov_b32 s22, {W1T_OFF}")
    srd(12, 6, 512*1792*2)
    e("s_branch tr_go")
    e("tr_w2:")
    e("s_sub_u32 s3, s3, 224")
    e("s_lshr_b32 s18, s3, 3")
    e("s_and_b32 s19, s3, 7")
    e("s_mov_b32 s20, 1024")
    e("s_mov_b32 s21, 3584")
    e(f"s_mov_b32 s22, {W2T_OFF}")
    srd(12, 16, 512*1792*2)
    e("tr_go:")
    e("v_lshrrev_b32 v1, 3, v0")
    e("v_and_b32 v2, 7, v0")
    e("s_lshl_b32 s23, s18, 6")
    e("s_mul_i32 s23, s23, s20")
    e("s_lshl_b32 s24, s19, 7")
    e("s_add_u32 s23, s23, s24")
    e("v_mul_lo_u32 v3, v1, s20")
    e("v_lshl_add_u32 v3, v2, 4, v3")
    e("v_add_u32 v3, s23, v3")
    e("s_lshl_b32 s25, s20, 5")
    e("v_add_u32 v4, s25, v3")
    e("buffer_load_dwordx4 v[8:11], v3, s[12:15], 0 offen")
    e("buffer_load_dwordx4 v[12:15], v4, s[12:15], 0 offen")
    e("v_mul_u32_u24 v5, 136, v1")
    e("v_lshl_add_u32 v5, v2, 4, v5")
    e("s_waitcnt vmcnt(0)")
    e("ds_write_b64 v5, v[8:9]")
    e("ds_write_b64 v5, v[10:11] offset:8")
    e(f"ds_write_b64 v5, v[12:13] offset:{32*136}")
    e(f"ds_write_b64 v5, v[14:15] offset:{32*136+8}")
    e("s_waitcnt lgkmcnt(0)")
    e("s_barrier")
    e("s_lshl_b32 s23, s19, 6")
    e("s_mul_i32 s23, s23, s21")
    e("s_lshl_b32 s24, s18, 7")
    e("s_add_u32 s23, s23, s24")
    e("s_add_u32 s23, s23, s22")
    e("s_lshl_b32 s26, s21, 5")
    for i in range(2):
        e(f"v_mul_u32_u24 v5, {8*136}, v2")
        e(f"v_lshl_add_u32 v5, v1, 1, v5")
        for r in range(8):
            e(f"ds_read_u16 v{16+r}, v5 offset:{r*136 + i*64}")
        e("s_waitcnt lgkmcnt(0)")
        for r in range(4):
            e(f"v_lshl_or_b32 v{24+r}, v{16+2*r+1}, 16, v{16+2*r}")
        e("v_mul_lo_u32 v6, v1, s21")
        e("v_lshl_add_u32 v6, v2, 4, v6")
        if i: e("v_add_u32 v6, s26, v6")
        e("buffer_store_dwordx4 v[24:27], v6, s[8:11], s23 offen")
        e("s_nop 1")

def kd(name, vgpr, lds_static=0):
    e(f".amdhsa_kernel {name}")
    e(f"  .amdhsa_next_free_vgpr {vgpr}")
    e("  .amdhsa_next_free_sgpr 102")
    e(f"  .amdhsa_accum_offset {vgpr}")
    e("  .amdhsa_group_segment_fixed_size 0")
    e("  .amdhsa_kernarg_size 136")
    e("  .amdhsa_user_sgpr_count 2")
    e("  .amdhsa_user_sgpr_kernarg_segment_ptr 1")
    e("  .amdhsa_system_sgpr_workgroup_id_x 1")
    e(".end_amdhsa_kernel")

def main():
    import gen2
    e(f"; @launch kernel=prep_kernel grid=({N_PREP},1,1) block=(256,1,1) lds=8704")
    e(f"; @launch kernel=mid_kernel grid=({gen2.N_MID},1,1) block=(256,1,1) lds={gen2.MID_LDS}")
    e(f"; @launch kernel=fin_kernel grid=({gen2.N_FIN},1,1) block=(256,1,1) lds={gen2.FIN_LDS}")
    e('.amdgcn_target "amdgcn-amd-amdhsa--gfx950"')
    e(".text")
    for k in ("prep_kernel", "mid_kernel", "fin_kernel"):
        e(f".globl {k}")
        e(f".type {k},@function")
    prep_kernel()
    gen2.emit(sys.modules[__name__])
    e('.section .rodata,"a"')
    e(".p2align 6")
    kd("prep_kernel", 128)
    e(".p2align 6")
    kd("mid_kernel", gen2.MID_VGPR)
    e(".p2align 6")
    kd("fin_kernel", gen2.FIN_VGPR)
    open(f"cdna_kernels/{NAME}.s", "w").write("\n".join(L) + "\n")

if __name__ == "__main__":
    main()
```

```python
import os
STAMP = bool(os.environ.get('STAMP'))
N_G1, N_CV = 224, 256
N_MID = N_G1 + N_CV
MID_LDS = 73728
MID_VGPR = 240
N_FIN = 256
FIN_LDS = 69632
FIN_VGPR = 240

def emit(G):
    e, vr, srd = G.e, G.vr, G.srd
    GELU_C = 0xc0135761
    e(".p2align 8")
    e("mid_kernel:")
    e(f"s_cmp_ge_u32 s2, {N_MID}")
    e("s_cbranch_scc1 mid_end")
    e("s_load_dwordx2 s[4:5], s[0:1], 128")
    e("s_waitcnt lgkmcnt(0)")
    srd(8, 4, G.WS_REC)
    e(f"s_cmp_ge_u32 s2, {N_G1}")
    e("s_cbranch_scc1 mid_conv")
    if STAMP: e("s_memtime s[40:41]")
    e("s_and_b32 s12, s2, 7")
    e("s_lshl_b32 s12, s12, 1")
    e("s_lshr_b32 s13, s2, 3")
    e("s_cmp_ge_u32 s13, 14")
    e("s_cselect_b32 s16, 1, 0")
    e("s_cselect_b32 s17, 14, 0")
    e("s_add_u32 s12, s12, s16")
    e("s_sub_u32 s13, s13, s17")
    e("s_lshl_b32 s14, s12, 17")
    e(f"s_add_u32 s14, s14, {G.Y2_OFF}")
    e("s_lshl_b32 s15, s13, 17")
    e(f"s_add_u32 s15, s15, {G.W1T_OFF}")
    e("v_lshrrev_b32 v1, 3, v0")
    e("v_and_b32 v2, 7, v0")
    e("v_lshlrev_b32 v3, 10, v1")
    e("v_lshl_add_u32 v3, v2, 4, v3")
    e("v_mul_u32_u24 v4, 144, v1")
    e("v_lshl_add_u32 v4, v2, 4, v4")
    e("v_add_u32 v14, 18432, v4")
    e("v_lshrrev_b32 v5, 6, v0")
    e("v_and_b32 v6, 31, v0")
    e("v_bfe_u32 v7, v0, 5, 1")
    e("v_lshrrev_b32 v8, 1, v5")
    e("v_and_b32 v9, 1, v5")
    e("v_lshl_add_u32 v10, v8, 6, v6")
    e("v_mul_u32_u24 v10, 144, v10")
    e("v_lshl_add_u32 v10, v7, 4, v10")
    e("v_lshl_add_u32 v11, v9, 6, v6")
    e("v_mul_u32_u24 v11, 144, v11")
    e("v_lshl_add_u32 v11, v7, 4, v11")
    e("v_add_u32 v11, 18432, v11")
    ACC = 64
    for i in range(64):
        e(f"v_mov_b32 v{ACC+i}, 0")
    ST = 16
    FR = 48
    def loads(c):
        ST = 144 + 32*(c % 3)
        for i in range(4):
            e(f"s_add_u32 s16, s14, {c*128 + i*32768}")
            e(f"buffer_load_dwordx4 {vr(ST+4*i,4)}, v3, s[8:11], s16 offen")
        for i in range(4):
            e(f"s_add_u32 s16, s15, {c*128 + i*32768}")
            e(f"buffer_load_dwordx4 {vr(ST+16+4*i,4)}, v3, s[8:11], s16 offen")
    def writes(b, c):
        ST = 144 + 32*(c % 3)
        for i in range(4):
            e(f"ds_write_b128 v4, {vr(ST+4*i,4)} offset:{b*36864 + i*32*144}")
        for i in range(4):
            e(f"ds_write_b128 v14, {vr(ST+16+4*i,4)} offset:{b*36864 + i*32*144}")
    e("s_load_dwordx2 s[6:7], s[0:1], 88")
    e("s_waitcnt lgkmcnt(0)")
    srd(24, 6, 1792*2)
    e("s_lshl_b32 s20, s13, 8")
    e("v_lshlrev_b32 v12, 7, v9")
    e("v_lshl_add_u32 v12, v7, 3, v12")
    e("v_add_u32 v12, s20, v12")
    e("v_lshl_add_u32 v13, v8, 6, v6")
    e("s_mov_b32 s21, 3584")
    e("v_mul_lo_u32 v13, v13, s21")
    e("v_add_u32 v13, v13, v12")
    e("s_mul_i32 s22, s12, 458752")
    e(f"s_add_u32 s22, s22, {G.H_OFF}")
    for nt in range(2):
        for g in range(4):
            e(f"buffer_load_dwordx2 {vr(32+8*nt+2*g,2)}, v12, s[24:27], 0 offen offset:{nt*64+g*16}")
    loads(0); loads(1); loads(2)
    e("s_waitcnt vmcnt(16)")
    writes(0, 0)
    e("s_waitcnt lgkmcnt(0)")
    e("s_barrier")
    if STAMP: e("s_memtime s[42:43]")
    for c in range(8):
        b = c & 1
        def frd(ks):
            o = b*36864 + ks*32; F = FR + 128*(ks & 1) if False else (FR if (ks & 1) == 0 else 128)
            e(f"ds_read_b128 {vr(F,4)}, v10 offset:{o}")
            e(f"ds_read_b128 {vr(F+4,4)}, v10 offset:{o+32*144}")
            e(f"ds_read_b128 {vr(F+8,4)}, v11 offset:{o}")
            e(f"ds_read_b128 {vr(F+12,4)}, v11 offset:{o+32*144}")
        frd(0)
        for ks in range(4):
            F = FR if (ks & 1) == 0 else 128
            if ks < 3:
                frd(ks+1)
                e("s_waitcnt lgkmcnt(4)")
            else:
                e("s_waitcnt lgkmcnt(0)")
            for nt in range(2):
                for mt in range(2):
                    a = ACC + 16*(2*nt+mt)
                    e(f"v_mfma_f32_32x32x16_bf16 {vr(a,16)}, {vr(F+8+4*nt,4)}, {vr(F+4*mt,4)}, {vr(a,16)}")
            if ks == 1 and c < 7:
                e(f"s_waitcnt vmcnt({8*min(1, 6-c)})")
                writes(b ^ 1, c+1)
        if c < 7:
            if c + 3 < 8: loads(c+3)
            e("s_waitcnt lgkmcnt(0)")
            e("s_barrier")
    e("s_nop 15")
    e("s_nop 7")
    if STAMP: e("s_memtime s[44:45]")
    e("s_mov_b32 s28, 0x3d372713")
    e(f"s_mov_b32 s29, {GELU_C}")
    for nt in range(2):
        for mt in range(2):
            a = ACC + 16*(2*nt+mt)
            e(f"s_add_u32 s23, s22, {mt*32*3584}")
            for gp in range(2):
                x = a + 8*gp
                T = 16
                for p in range(4):
                    e(f"v_cvt_pk_bf16_f32 v{T+p}, v{x+2*p}, v{x+2*p+1}")
                for p in range(4):
                    bb = 32 + 8*nt + 4*gp + p
                    e(f"v_lshlrev_b32 v{x+2*p}, 16, v{T+p}")
                    e(f"v_and_b32 v{x+2*p+1}, 0xffff0000, v{T+p}")
                    e(f"v_lshlrev_b32 v{T+4+p}, 16, v{bb}")
                    e(f"v_and_b32 v{T+8+p}, 0xffff0000, v{bb}")
                for p in range(4):
                    e(f"v_add_f32 v{x+2*p}, v{x+2*p}, v{T+4+p}")
                    e(f"v_add_f32 v{x+2*p+1}, v{x+2*p+1}, v{T+8+p}")
                for p in range(4):
                    e(f"v_cvt_pk_bf16_f32 v{T+p}, v{x+2*p}, v{x+2*p+1}")
                for p in range(4):
                    e(f"v_lshlrev_b32 v{x+2*p}, 16, v{T+p}")
                    e(f"v_and_b32 v{x+2*p+1}, 0xffff0000, v{T+p}")
                for j in range(8): e(f"v_mul_f32 v{T+j}, v{x+j}, v{x+j}")
                for j in range(8): e(f"v_mul_f32 v{T+j}, s28, v{T+j}")
                for j in range(8): e(f"v_fma_f32 v{T+j}, v{T+j}, v{x+j}, v{x+j}")
                for j in range(8): e(f"v_mul_f32 v{T+j}, s29, v{T+j}")
                for j in range(8): e(f"v_exp_f32 v{T+j}, v{T+j}")
                for j in range(8): e(f"v_add_f32 v{T+j}, 1.0, v{T+j}")
                for j in range(8): e(f"v_rcp_f32 v{T+j}, v{T+j}")
                for j in range(8): e(f"v_mul_f32 v{x+j}, v{x+j}, v{T+j}")
                O = 48 + 4*((2*(2*nt+mt)+gp) % 4)
                for p in range(4):
                    e(f"v_cvt_pk_bf16_f32 v{O+p}, v{x+2*p}, v{x+2*p+1}")
                e(f"buffer_store_dwordx2 {vr(O,2)}, v13, s[8:11], s23 offen offset:{nt*64+(2*gp)*16}")
                e(f"buffer_store_dwordx2 {vr(O+2,2)}, v13, s[8:11], s23 offen offset:{nt*64+(2*gp+1)*16}")
    if STAMP:
        e("s_waitcnt vmcnt(0)")
        e("s_memtime s[46:47]")
        e("s_load_dwordx2 s[48:49], s[0:1], 120")
        e("s_waitcnt lgkmcnt(0)")
        srd(52, 48, 256)
        e("s_cmp_lg_u32 s2, 9")
        e("s_cbranch_scc1 mid_end")
        e("v_cmp_eq_u32 vcc, 0, v0")
        e("s_and_saveexec_b64 s[56:57], vcc")
        e("s_cbranch_execz mid_end")
        for i in range(4):
            e(f"s_sub_u32 s58, s{40+2*i}, s40")
            e(f"v_mov_b32 v1, s58")
            e(f"v_mov_b32 v2, {4*i}")
            e("buffer_store_dword v1, v2, s[52:55], 0 offen")
    e("s_branch mid_end")
    UREG = 9088; KB = 2*UREG; KCP = 4240; KREG = 4*KCP
    e("mid_conv:")
    e(f"s_sub_u32 s3, s2, {N_G1}")
    e("s_load_dwordx2 s[6:7], s[0:1], 64")
    e("v_mov_b32 v8, 0"); e("v_mov_b32 v9, 0"); e("v_mov_b32 v10, 0"); e("v_mov_b32 v11, 0")
    e("v_lshlrev_b32 v1, 4, v0")
    for c in range(2):
        e(f"ds_write_b128 v1, v[8:11] offset:{c*UREG}")
        e("v_cmp_gt_u32 vcc, 24, v0")
        e("s_and_saveexec_b64 s[20:21], vcc")
        e(f"ds_write_b128 v1, v[8:11] offset:{c*UREG + 4096}")
        e("s_mov_b64 exec, s[20:21]")
    for i in range(8):
        e(f"ds_write_b128 v1, v[8:11] offset:{KB + 4096*i}")
    e("v_cmp_gt_u32 vcc, 72, v0")
    e("s_and_saveexec_b64 s[20:21], vcc")
    e(f"ds_write_b128 v1, v[8:11] offset:{KB + 4096*8}")
    e("s_mov_b64 exec, s[20:21]")
    e("s_waitcnt lgkmcnt(0)")
    e("s_barrier")
    e("s_lshl_b32 s12, s3, 5")
    e(f"s_add_u32 s12, s12, {G.XNT_OFF}")
    e("v_lshlrev_b32 v2, 13, v0")
    e("buffer_load_dwordx4 v[12:15], v2, s[8:11], s12 offen")
    e("buffer_load_dwordx4 v[16:19], v2, s[8:11], s12 offen offset:16")
    e("v_lshrrev_b32 v3, 3, v0")
    e("v_add_u32 v3, 31, v3")
    e("v_mul_u32_u24 v3, 144, v3")
    e("v_and_b32 v4, 7, v0")
    e("v_lshl_add_u32 v3, v4, 4, v3")
    e("s_waitcnt vmcnt(0)")
    e("ds_write_b128 v3, v[12:15]")
    e(f"ds_write_b128 v3, v[16:19] offset:{UREG}")
    e(f"s_mul_i32 s13, s3, {2*G.KC_PITCH}")
    e(f"s_add_u32 s13, s13, {G.KC_OFF}")
    for i in range(8):
        e(f"v_add_u32 v5, {256*i}, v0")
        e("v_cvt_f32_u32 v6, v5")
        e("v_cvt_pk_bf16_f32 v6, v6, v6")
        e("v_and_b32 v6, 0xffff, v6")
        e("v_subrev_u32 v6, 17024, v6")
        e("v_cmp_gt_u32 vcc, 256, v5")
        e("s_nop 1")
        e("v_cndmask_b32 v6, v6, v5, vcc")
        e("v_lshlrev_b32 v6, 2, v6")
        e(f"buffer_load_dword v{20+2*i}, v6, s[8:11], s13 offen")
        e(f"buffer_load_dword v{21+2*i}, v6, s[8:11], s13 offen offset:{G.KC_PITCH}")
    e("s_waitcnt vmcnt(0)")
    e("v_lshlrev_b32 v7, 1, v0")
    e("v_sub_u32 v7, 4094, v7")
    for i in range(8):
        e(f"v_cvt_pk_bf16_f32 v5, v{20+2*i}, v{21+2*i}")
        e(f"ds_write_b16 v7, v5 offset:{KB + 4096 - 512*i - 4096 + 0}" if False else f"v_subrev_u32 v6, {512*i}, v7")
        for cc in range(4):
            e(f"ds_write_b16 v6, v5 offset:{KB + cc*KCP + 8 - 2*cc}")
            e(f"ds_write_b16_d16_hi v6, v5 offset:{KB + KREG + cc*KCP + 8 - 2*cc}")
    e("s_waitcnt lgkmcnt(0)")
    e("s_barrier")
    e("v_lshrrev_b32 v5, 6, v0")
    e("v_lshrrev_b32 v8, 1, v5")
    e("v_and_b32 v9, 1, v5")
    e("v_and_b32 v6, 31, v0")
    e("v_bfe_u32 v7, v0, 5, 1")
    e("v_lshlrev_b32 v10, 5, v9")
    e("v_add_u32 v10, v10, v6")
    e("v_sub_u32 v10, 63, v10")
    e("v_lshl_add_u32 v10, v7, 3, v10")
    e("v_and_b32 v13, 3, v10")
    e("v_and_b32 v10, -4, v10")
    e("v_lshlrev_b32 v10, 1, v10")
    e(f"v_mul_u32_u24 v13, {KCP}, v13")
    e("v_add3_u32 v10, v10, v13, 8")
    e(f"v_mul_u32_u24 v12, {KREG}, v8")
    e("v_add_u32 v10, v10, v12")
    e(f"v_add_u32 v10, {KB}, v10")
    e("v_mul_u32_u24 v11, 144, v6")
    e("v_lshl_add_u32 v11, v7, 4, v11")
    e(f"v_mul_u32_u24 v12, {UREG}, v8")
    e("v_add_u32 v11, v11, v12")
    ACC = 64
    for i in range(16):
        e(f"v_mov_b32 v{ACC+i}, 0")
    steps = [(m, j0) for m in range(32) for j0 in (0, 16, 32, 48)]
    def rd(k, slot):
        m, j0 = steps[k]
        e(f"ds_read_b64 {vr(16+8*slot,2)}, v10 offset:{2*(64*(31-m)+j0)}")
        e(f"ds_read_b64 {vr(18+8*slot,2)}, v10 offset:{2*(64*(31-m)+j0)+8}")
        e(f"ds_read_b128 {vr(20+8*slot,4)}, v11 offset:{(31-m)*144 + 2*j0}")
    NS = 4
    for k in range(NS-1): rd(k, k)
    for k in range(len(steps)):
        if k + NS - 1 < len(steps):
            rd(k+NS-1, (k+NS-1) % NS)
            e(f"s_waitcnt lgkmcnt({3*(NS-1)})")
        else:
            e(f"s_waitcnt lgkmcnt({3*(len(steps)-1-k)})")
        s = k % NS
        e(f"v_mfma_f32_32x32x16_bf16 {vr(ACC,16)}, {vr(16+8*s,4)}, {vr(20+8*s,4)}, {vr(ACC,16)}")
    e("s_nop 15")
    e("s_nop 7")
    e("s_waitcnt lgkmcnt(0)")
    srd(16, 6, 1024)
    e("s_lshl_b32 s20, s3, 2")
    e("v_lshlrev_b32 v13, 1, v8")
    e("v_add_u32 v13, s20, v13")
    e("buffer_load_ushort v13, v13, s[16:19], 0 offen")
    e("v_mul_u32_u24 v14, 144, v6")
    e("v_add_u32 v14, v14, v12")
    e("v_lshl_add_u32 v14, v9, 6, v14")
    e("v_lshl_add_u32 v14, v7, 3, v14")
    e("v_lshlrev_b32 v15, 7, v6")
    e("v_lshl_add_u32 v15, v9, 6, v15")
    e("v_lshl_add_u32 v15, v7, 3, v15")
    e("v_lshl_add_u32 v15, v8, 12, v15")
    e("s_lshl_b32 s21, s3, 13")
    e(f"s_add_u32 s21, s21, {G.YA_OFF}")
    e("s_waitcnt vmcnt(0)")
    e("v_lshlrev_b32 v13, 16, v13")
    for g in range(4):
        e(f"ds_read_b64 v[16:17], v14 offset:{31*144 + 16*g}")
        e("s_waitcnt lgkmcnt(0)")
        x = 24
        e("v_lshlrev_b32 v20, 16, v16"); e("v_and_b32 v21, 0xffff0000, v16")
        e("v_lshlrev_b32 v22, 16, v17"); e("v_and_b32 v23, 0xffff0000, v17")
        for j in range(4):
            e(f"v_mul_f32 v{20+j}, v{20+j}, v13")
            e(f"v_mov_b32 v{x+j}, v{ACC+4*g+j}")
        G.rbf_inplace(20, 21, 30); G.rbf_inplace(22, 23, 30)
        G.rbf_inplace(x, x+1, 30); G.rbf_inplace(x+2, x+3, 30)
        for j in range(4):
            e(f"v_add_f32 v{x+j}, v{x+j}, v{20+j}")
        e(f"v_cvt_pk_bf16_f32 v32, v{x}, v{x+1}")
        e(f"v_cvt_pk_bf16_f32 v33, v{x+2}, v{x+3}")
        e(f"buffer_store_dwordx2 v[32:33], v15, s[8:11], s21 offen offset:{16*g}")
    e("mid_end:")
    e("s_endpgm")

    e(".p2align 8")
    e("fin_kernel:")
    e(f"s_cmp_ge_u32 s2, {N_FIN}")
    e("s_cbranch_scc1 fin_end")
    e("s_load_dwordx2 s[4:5], s[0:1], 128")
    e("s_waitcnt lgkmcnt(0)")
    srd(8, 4, G.WS_REC)
    if STAMP: e("s_memtime s[40:41]")
    e("s_and_b32 s12, s2, 7")
    e("s_lshl_b32 s12, s12, 2")
    e("s_lshr_b32 s13, s2, 6")
    e("s_add_u32 s12, s12, s13")
    e("s_bfe_u32 s13, s2, 0x30003")
    e("s_mul_i32 s14, s12, 229376")
    e(f"s_add_u32 s14, s14, {G.H_OFF}")
    e("s_mul_i32 s15, s13, 229376")
    e(f"s_add_u32 s15, s15, {G.W2T_OFF}")
    e("v_lshrrev_b32 v1, 4, v0")
    e("v_and_b32 v2, 15, v0")
    e("s_mov_b32 s21, 3584")
    e("v_mul_lo_u32 v3, v1, s21")
    e("v_lshl_add_u32 v3, v2, 4, v3")
    e("v_mul_u32_u24 v4, 272, v1")
    e("v_lshl_add_u32 v4, v2, 4, v4")
    e("v_lshrrev_b32 v5, 6, v0")
    e("v_and_b32 v6, 31, v0")
    e("v_bfe_u32 v7, v0, 5, 1")
    e("v_lshrrev_b32 v8, 1, v5")
    e("v_and_b32 v9, 1, v5")
    e("v_lshl_add_u32 v10, v8, 5, v6")
    e("v_mul_u32_u24 v10, 272, v10")
    e("v_lshl_add_u32 v10, v7, 4, v10")
    e("v_lshl_add_u32 v11, v9, 5, v6")
    e("v_mul_u32_u24 v11, 272, v11")
    e("v_lshl_add_u32 v11, v7, 4, v11")
    e("v_add_u32 v11, 17408, v11")
    ACC = 64
    for i in range(16):
        e(f"v_mov_b32 v{ACC+i}, 0")
    ST = 16; FR = 48
    def floads(c):
        ST = 112 + 32*(c % 4)
        for i in range(4):
            e(f"s_add_u32 s16, s14, {c*256 + i*16*3584}")
            e(f"buffer_load_dwordx4 {vr(ST+4*i,4)}, v3, s[8:11], s16 offen")
        for i in range(4):
            e(f"s_add_u32 s16, s15, {c*256 + i*16*3584}")
            e(f"buffer_load_dwordx4 {vr(ST+16+4*i,4)}, v3, s[8:11], s16 offen")
    def fwrites(b, c):
        ST = 112 + 32*(c % 4)
        for i in range(4):
            e(f"ds_write_b128 v4, {vr(ST+4*i,4)} offset:{b*34816 + i*16*272}")
        for i in range(4):
            e(f"ds_write_b128 v4, {vr(ST+16+4*i,4)} offset:{b*34816 + 17408 + i*16*272}")
    e("s_load_dwordx2 s[6:7], s[0:1], 104")
    e("s_load_dwordx2 s[24:25], s[0:1], 0")
    e("s_load_dwordx2 s[26:27], s[0:1], 112")
    e("s_waitcnt lgkmcnt(0)")
    srd(16, 6, 1024)
    srd(28, 24, 2048*1024)
    srd(32, 26, 2048*1024)
    e("s_lshl_b32 s20, s13, 6")
    e("v_lshl_add_u32 v12, v9, 5, v6")
    e("v_add_u32 v12, s20, v12")
    e("v_lshlrev_b32 v13, 1, v12")
    e("buffer_load_ushort v14, v13, s[16:19], 0 offen")
    e("s_lshl_b32 s20, s12, 6")
    e("v_lshlrev_b32 v15, 5, v8")
    e("v_lshl_add_u32 v15, v7, 2, v15")
    e("v_add_u32 v15, s20, v15")
    e("v_lshlrev_b32 v16, 12, v12")
    e("v_lshl_add_u32 v16, v15, 1, v16")
    e("v_lshlrev_b32 v17, 10, v15")
    e("v_add_u32 v17, v17, v13")
    e(f"s_mov_b32 s22, {G.YA_OFF}")
    for g in range(4):
        e(f"buffer_load_dwordx2 {vr(48+2*g,2)}, v16, s[8:11], s22 offen offset:{16*g}")
        e(f"s_mov_b32 s23, {8*g*1024}")
        for j in range(4):
            e(f"buffer_load_ushort v{32+4*g+j}, v17, s[28:31], s23 offen offset:{j*1024}")
    floads(0); floads(1); floads(2); floads(3)
    e("s_waitcnt vmcnt(24)")
    fwrites(0, 0)
    e("s_waitcnt lgkmcnt(0)")
    e("s_barrier")
    if STAMP: e("s_memtime s[42:43]")
    for c in range(14):
        b = c & 1
        def frd2(ks):
            o = b*34816 + ks*32; sl = ks & 3
            e(f"ds_read_b128 {vr(80+8*sl,4)}, v10 offset:{o}")
            e(f"ds_read_b128 {vr(84+8*sl,4)}, v11 offset:{o}")
        for ks in range(3): frd2(ks)
        for ks in range(8):
            sl = ks & 3
            if ks + 3 < 8:
                frd2(ks+3)
                e("s_waitcnt lgkmcnt(6)")
            else:
                e(f"s_waitcnt lgkmcnt({2*(7-ks)})")
            e(f"v_mfma_f32_32x32x16_bf16 {vr(ACC,16)}, {vr(80+8*sl,4)}, {vr(84+8*sl,4)}, {vr(ACC,16)}")
            if ks == 5 and c < 13:
                e(f"s_waitcnt vmcnt({8*min(2, 12-c)})")
                fwrites(b ^ 1, c+1)
        if c < 13:
            if c + 4 < 14: floads(c+4)
            e("s_waitcnt lgkmcnt(0)")
            e("s_barrier")
    e("s_nop 15")
    e("s_nop 7")
    if STAMP: e("s_memtime s[44:45]")
    e("v_lshlrev_b32 v14, 16, v14")
    for g in range(4):
        x = 24
        for j in range(4):
            e(f"v_mov_b32 v{x+j}, v{ACC+4*g+j}")
            e(f"v_lshlrev_b32 v{20+j}, 16, v{32+4*g+j}")
        G.rbf_inplace(x, x+1, 30); G.rbf_inplace(x+2, x+3, 30)
        for j in range(4):
            e(f"v_add_f32 v{x+j}, v{x+j}, v14")
        G.rbf_inplace(x, x+1, 30); G.rbf_inplace(x+2, x+3, 30)
        e(f"v_lshlrev_b32 v31, 16, v{48+2*g}"); e("v_add_f32 v20, v20, v31")
        e(f"v_and_b32 v31, 0xffff0000, v{48+2*g}"); e("v_add_f32 v21, v21, v31")
        e(f"v_lshlrev_b32 v31, 16, v{49+2*g}"); e("v_add_f32 v22, v22, v31")
        e(f"v_and_b32 v31, 0xffff0000, v{49+2*g}"); e("v_add_f32 v23, v23, v31")
        G.rbf_inplace(20, 21, 30); G.rbf_inplace(22, 23, 30)
        for j in range(4):
            e(f"v_add_f32 v{x+j}, v{x+j}, v{20+j}")
        e(f"v_cvt_pk_bf16_f32 v{56+2*g}, v{x}, v{x+1}")
        e(f"v_cvt_pk_bf16_f32 v{57+2*g}, v{x+2}, v{x+3}")
        e(f"s_mov_b32 s23, {8*g*1024}")
        e(f"buffer_store_short v{56+2*g}, v17, s[32:35], s23 offen offset:0")
        e(f"buffer_store_short_d16_hi v{56+2*g}, v17, s[32:35], s23 offen offset:1024")
        e(f"buffer_store_short v{57+2*g}, v17, s[32:35], s23 offen offset:2048")
        e(f"buffer_store_short_d16_hi v{57+2*g}, v17, s[32:35], s23 offen offset:3072")
    if STAMP:
        e("s_waitcnt vmcnt(0)")
        e("s_memtime s[46:47]")
        e("s_load_dwordx2 s[48:49], s[0:1], 120")
        e("s_waitcnt lgkmcnt(0)")
        srd(52, 48, 256)
        e("s_cmp_lg_u32 s2, 9")
        e("s_cbranch_scc1 fin_end")
        e("v_cmp_eq_u32 vcc, 0, v0")
        e("s_and_saveexec_b64 s[56:57], vcc")
        e("s_cbranch_execz fin_end")
        for i in range(4):
            e(f"s_sub_u32 s58, s{40+2*i}, s40")
            e(f"v_mov_b32 v1, s58")
            e(f"v_mov_b32 v2, {4*i}")
            e("buffer_store_dword v1, v2, s[52:55], 0 offen")
    e("fin_end:")
    e("s_endpgm")
```

```python
import os
STAMP = bool(os.environ.get('STAMP'))
N_G1, N_CV = 224, 256
N_MID = N_G1 + N_CV
MID_LDS = 73728
MID_VGPR = 152
N_FIN = 256
FIN_LDS = 131072
FIN_VGPR = 152

def emit(G):
    e, vr, srd = G.e, G.vr, G.srd
    GELU_C = 0xc0135761
    e(".p2align 8")
    e("mid_kernel:")
    e(f"s_cmp_ge_u32 s2, {N_MID}")
    e("s_cbranch_scc1 mid_end")
    e("s_load_dwordx2 s[4:5], s[0:1], 128")
    e("s_waitcnt lgkmcnt(0)")
    srd(8, 4, G.WS_REC)
    e(f"s_cmp_ge_u32 s2, {N_G1}")
    e("s_cbranch_scc1 mid_conv")
    if STAMP: e("s_memtime s[40:41]")
    e("s_and_b32 s12, s2, 7")
    e("s_lshl_b32 s12, s12, 1")
    e("s_lshr_b32 s13, s2, 3")
    e("s_cmp_ge_u32 s13, 14")
    e("s_cselect_b32 s16, 1, 0")
    e("s_cselect_b32 s17, 14, 0")
    e("s_add_u32 s12, s12, s16")
    e("s_sub_u32 s13, s13, s17")
    e("s_lshl_b32 s14, s12, 17")
    e(f"s_add_u32 s14, s14, {G.Y2_OFF}")
    e("s_lshl_b32 s15, s13, 17")
    e(f"s_add_u32 s15, s15, {G.W1T_OFF}")
    e("v_lshrrev_b32 v5, 6, v0")
    e("v_and_b32 v6, 31, v0")
    e("v_bfe_u32 v7, v0, 5, 1")
    e("v_lshrrev_b32 v8, 1, v5")
    e("v_and_b32 v9, 1, v5")
    e("v_bfe_u32 v1, v0, 2, 4")
    e("v_lshl_add_u32 v1, v5, 5, v1")
    e("v_and_b32 v2, 3, v0")
    e("v_bfe_u32 v4, v0, 4, 2")
    e("v_xor_b32 v2, v2, v4")
    e("v_lshlrev_b32 v3, 10, v1")
    e("v_lshl_add_u32 v3, v2, 4, v3")
    e("v_readfirstlane_b32 s36, v5")
    e("s_nop 3")
    e("s_lshl_b32 s36, s36, 11")
    e("v_bfe_u32 v1, v0, 2, 2")
    e("v_xor_b32 v1, v1, v7")
    e("v_lshl_add_u32 v2, v8, 6, v6")
    e("v_lshlrev_b32 v2, 6, v2")
    e("v_lshl_add_u32 v4, v9, 6, v6")
    e("v_lshlrev_b32 v4, 6, v4")
    e("v_add_u32 v4, 8192, v4")
    for ks in range(2):
        e(f"v_xor_b32 v10, {2*ks}, v1")
        e(f"v_lshl_add_u32 v{144+ks}, v10, 4, v2")
        e(f"v_lshl_add_u32 v{146+ks}, v10, 4, v4")
    ACC = 64
    for i in range(64):
        e(f"v_mov_b32 v{ACC+i}, 0")
    FR = 48
    def loads(c):
        slot = (c % 4) * 16384
        for which, base in ((0, 14), (1, 15)):
            for i in range(2):
                e(f"s_add_u32 s16, s{base}, {c*64 + i*16384}")
                e(f"s_add_u32 s37, s36, {slot + which*8192 + i*1024}")
                e("s_mov_b32 m0, s37")
                e("s_nop 0")
                e("buffer_load_dwordx4 v3, s[8:11], s16 offen lds")
    e("s_load_dwordx2 s[6:7], s[0:1], 88")
    e("s_waitcnt lgkmcnt(0)")
    srd(24, 6, 1792*2)
    e("s_lshl_b32 s20, s13, 8")
    e("v_lshlrev_b32 v12, 7, v9")
    e("v_lshl_add_u32 v12, v7, 3, v12")
    e("v_add_u32 v12, s20, v12")
    e("v_lshl_add_u32 v13, v8, 6, v6")
    e("s_mov_b32 s21, 3584")
    e("v_mul_lo_u32 v13, v13, s21")
    e("v_add_u32 v13, v13, v12")
    e("s_mul_i32 s22, s12, 458752")
    e(f"s_add_u32 s22, s22, {G.H_OFF}")
    for nt in range(2):
        for g in range(4):
            e(f"buffer_load_dwordx2 {vr(32+8*nt+2*g,2)}, v12, s[24:27], 0 offen offset:{nt*64+g*16}")
    loads(0); loads(1); loads(2)
    e("s_waitcnt vmcnt(8)")
    e("s_barrier")
    for c in range(16):
        if c + 3 < 16: loads(c+3)
        o = (c % 4) * 16384
        def frd(ks):
            F = FR if ks == 0 else 128
            e(f"ds_read_b128 {vr(F,4)}, v{144+ks} offset:{o}")
            e(f"ds_read_b128 {vr(F+4,4)}, v{144+ks} offset:{o+2048}")
            e(f"ds_read_b128 {vr(F+8,4)}, v{146+ks} offset:{o}")
            e(f"ds_read_b128 {vr(F+12,4)}, v{146+ks} offset:{o+2048}")
        frd(0); frd(1)
        for ks in range(2):
            F = FR if ks == 0 else 128
            e(f"s_waitcnt lgkmcnt({4*(1-ks)})")
            for nt in range(2):
                for mt in range(2):
                    a_ = ACC + 16*(2*nt+mt)
                    e(f"v_mfma_f32_32x32x16_bf16 {vr(a_,16)}, {vr(F+8+4*nt,4)}, {vr(F+4*mt,4)}, {vr(a_,16)}")
        if c < 15:
            e(f"s_waitcnt vmcnt({4*min(2, 14-c)})")
            e("s_barrier")
    e("s_nop 15")
    e("s_nop 7")
    if STAMP: e("s_memtime s[44:45]")
    e("s_mov_b32 s28, 0x3d372713")
    e(f"s_mov_b32 s29, {GELU_C}")
    for nt in range(2):
        for mt in range(2):
            a = ACC + 16*(2*nt+mt)
            e(f"s_add_u32 s23, s22, {mt*32*3584}")
            for gp in range(2):
                x = a + 8*gp
                T = 16
                for p in range(4):
                    e(f"v_cvt_pk_bf16_f32 v{T+p}, v{x+2*p}, v{x+2*p+1}")
                for p in range(4):
                    bb = 32 + 8*nt + 4*gp + p
                    e(f"v_lshlrev_b32 v{x+2*p}, 16, v{T+p}")
                    e(f"v_and_b32 v{x+2*p+1}, 0xffff0000, v{T+p}")
                    e(f"v_lshlrev_b32 v{T+4+p}, 16, v{bb}")
                    e(f"v_and_b32 v{T+8+p}, 0xffff0000, v{bb}")
                for p in range(4):
                    e(f"v_add_f32 v{x+2*p}, v{x+2*p}, v{T+4+p}")
                    e(f"v_add_f32 v{x+2*p+1}, v{x+2*p+1}, v{T+8+p}")
                for p in range(4):
                    e(f"v_cvt_pk_bf16_f32 v{T+p}, v{x+2*p}, v{x+2*p+1}")
                for p in range(4):
                    e(f"v_lshlrev_b32 v{x+2*p}, 16, v{T+p}")
                    e(f"v_and_b32 v{x+2*p+1}, 0xffff0000, v{T+p}")
                for j in range(8): e(f"v_mul_f32 v{T+j}, v{x+j}, v{x+j}")
                for j in range(8): e(f"v_mul_f32 v{T+j}, s28, v{T+j}")
                for j in range(8): e(f"v_fma_f32 v{T+j}, v{T+j}, v{x+j}, v{x+j}")
                for j in range(8): e(f"v_mul_f32 v{T+j}, s29, v{T+j}")
                for j in range(8): e(f"v_exp_f32 v{T+j}, v{T+j}")
                for j in range(8): e(f"v_add_f32 v{T+j}, 1.0, v{T+j}")
                for j in range(8): e(f"v_rcp_f32 v{T+j}, v{T+j}")
                for j in range(8): e(f"v_mul_f32 v{x+j}, v{x+j}, v{T+j}")
                O = 48 + 4*((2*(2*nt+mt)+gp) % 4)
                for p in range(4):
                    e(f"v_cvt_pk_bf16_f32 v{O+p}, v{x+2*p}, v{x+2*p+1}")
                e(f"buffer_store_dwordx2 {vr(O,2)}, v13, s[8:11], s23 offen offset:{nt*64+(2*gp)*16}")
                e(f"buffer_store_dwordx2 {vr(O+2,2)}, v13, s[8:11], s23 offen offset:{nt*64+(2*gp+1)*16}")
    if STAMP:
        e("s_waitcnt vmcnt(0)")
        e("s_memtime s[46:47]")
        e("s_load_dwordx2 s[48:49], s[0:1], 120")
        e("s_waitcnt lgkmcnt(0)")
        srd(52, 48, 256)
        e("s_cmp_lg_u32 s2, 9")
        e("s_cbranch_scc1 mid_end")
        e("v_cmp_eq_u32 vcc, 0, v0")
        e("s_and_saveexec_b64 s[56:57], vcc")
        e("s_cbranch_execz mid_end")
        for i in range(4):
            e(f"s_sub_u32 s58, s{40+2*i}, s40")
            e(f"v_mov_b32 v1, s58")
            e(f"v_mov_b32 v2, {4*i}")
            e("buffer_store_dword v1, v2, s[52:55], 0 offen")
    e("s_branch mid_end")
    UREG = 9088; KB = 2*UREG; KCP = 4240; KREG = 4*KCP
    e("mid_conv:")
    if STAMP: e("s_memtime s[40:41]")
    e(f"s_sub_u32 s3, s2, {N_G1}")
    e("s_load_dwordx2 s[6:7], s[0:1], 64")
    e("s_lshl_b32 s12, s3, 5")
    e(f"s_add_u32 s12, s12, {G.XNT_OFF}")
    e("v_lshlrev_b32 v2, 13, v0")
    e("buffer_load_dwordx4 v[12:15], v2, s[8:11], s12 offen")
    e("buffer_load_dwordx4 v[16:19], v2, s[8:11], s12 offen offset:16")
    e("v_lshrrev_b32 v3, 3, v0")
    e("v_add_u32 v3, 31, v3")
    e("v_mul_u32_u24 v3, 144, v3")
    e("v_and_b32 v4, 7, v0")
    e("v_lshl_add_u32 v3, v4, 4, v3")
    e(f"s_mul_i32 s13, s3, {2*G.KC_PITCH}")
    e(f"s_add_u32 s13, s13, {G.KC_OFF}")
    for i in range(8):
        e(f"v_add_u32 v5, {256*i}, v0")
        e("v_cvt_f32_u32 v6, v5")
        e("v_cvt_pk_bf16_f32 v6, v6, v6")
        e("v_and_b32 v6, 0xffff, v6")
        e("v_subrev_u32 v6, 17024, v6")
        e("v_cmp_gt_u32 vcc, 256, v5")
        e("s_nop 1")
        e("v_cndmask_b32 v6, v6, v5, vcc")
        e("v_lshlrev_b32 v6, 2, v6")
        e(f"buffer_load_dword v{20+2*i}, v6, s[8:11], s13 offen")
        e(f"buffer_load_dword v{21+2*i}, v6, s[8:11], s13 offen offset:{G.KC_PITCH}")
    e("v_mov_b32 v8, 0"); e("v_mov_b32 v9, 0"); e("v_mov_b32 v10, 0"); e("v_mov_b32 v11, 0")
    e("v_lshlrev_b32 v1, 4, v0")
    for c in range(2):
        e(f"ds_write_b128 v1, v[8:11] offset:{c*UREG}")
        e("v_cmp_gt_u32 vcc, 24, v0")
        e("s_and_saveexec_b64 s[20:21], vcc")
        e(f"ds_write_b128 v1, v[8:11] offset:{c*UREG + 4096}")
        e("s_mov_b64 exec, s[20:21]")
    for i in range(8):
        e(f"ds_write_b128 v1, v[8:11] offset:{KB + 4096*i}")
    e("v_cmp_gt_u32 vcc, 72, v0")
    e("s_and_saveexec_b64 s[20:21], vcc")
    e(f"ds_write_b128 v1, v[8:11] offset:{KB + 4096*8}")
    e("s_mov_b64 exec, s[20:21]")
    e("s_waitcnt lgkmcnt(0)")
    e("s_barrier")
    e("s_waitcnt vmcnt(0)")
    e("ds_write_b128 v3, v[12:15]")
    e(f"ds_write_b128 v3, v[16:19] offset:{UREG}")
    e("s_waitcnt vmcnt(0)")
    e("v_lshlrev_b32 v7, 1, v0")
    e("v_sub_u32 v7, 4094, v7")
    for i in range(8):
        e(f"v_cvt_pk_bf16_f32 v5, v{20+2*i}, v{21+2*i}")
        e(f"ds_write_b16 v7, v5 offset:{KB + 4096 - 512*i - 4096 + 0}" if False else f"v_subrev_u32 v6, {512*i}, v7")
        for cc in range(4):
            e(f"ds_write_b16 v6, v5 offset:{KB + cc*KCP + 8 - 2*cc}")
            e(f"ds_write_b16_d16_hi v6, v5 offset:{KB + KREG + cc*KCP + 8 - 2*cc}")
    e("s_waitcnt lgkmcnt(0)")
    e("s_barrier")
    if STAMP: e("s_memtime s[42:43]")
    e("v_lshrrev_b32 v5, 6, v0")
    e("v_lshrrev_b32 v8, 1, v5")
    e("v_and_b32 v9, 1, v5")
    e("v_and_b32 v6, 31, v0")
    e("v_bfe_u32 v7, v0, 5, 1")
    e("v_lshlrev_b32 v10, 5, v9")
    e("v_add_u32 v10, v10, v6")
    e("v_sub_u32 v10, 63, v10")
    e("v_lshl_add_u32 v10, v7, 3, v10")
    e("v_and_b32 v13, 3, v10")
    e("v_and_b32 v10, -4, v10")
    e("v_lshlrev_b32 v10, 1, v10")
    e(f"v_mul_u32_u24 v13, {KCP}, v13")
    e("v_add3_u32 v10, v10, v13, 8")
    e(f"v_mul_u32_u24 v12, {KREG}, v8")
    e("v_add_u32 v10, v10, v12")
    e(f"v_add_u32 v10, {KB}, v10")
    e("v_mul_u32_u24 v11, 144, v6")
    e("v_lshl_add_u32 v11, v7, 4, v11")
    e(f"v_mul_u32_u24 v12, {UREG}, v8")
    e("v_add_u32 v11, v11, v12")
    ACC = 64
    for i in range(16):
        e(f"v_mov_b32 v{ACC+i}, 0")
    steps = [(m, j0) for m in range(32) for j0 in (0, 16, 32, 48)]
    def rd(k, slot):
        m, j0 = steps[k]
        e(f"ds_read_b64 {vr(16+8*slot,2)}, v10 offset:{2*(64*(31-m)+j0)}")
        e(f"ds_read_b64 {vr(18+8*slot,2)}, v10 offset:{2*(64*(31-m)+j0)+8}")
        e(f"ds_read_b128 {vr(20+8*slot,4)}, v11 offset:{(31-m)*144 + 2*j0}")
    NS = 4
    for k in range(NS-1): rd(k, k)
    for k in range(len(steps)):
        if k + NS - 1 < len(steps):
            rd(k+NS-1, (k+NS-1) % NS)
            e(f"s_waitcnt lgkmcnt({3*(NS-1)})")
        else:
            e(f"s_waitcnt lgkmcnt({3*(len(steps)-1-k)})")
        s = k % NS
        e(f"v_mfma_f32_32x32x16_bf16 {vr(ACC,16)}, {vr(16+8*s,4)}, {vr(20+8*s,4)}, {vr(ACC,16)}")
    e("s_nop 15")
    e("s_nop 7")
    if STAMP: e("s_memtime s[44:45]")
    e("s_waitcnt lgkmcnt(0)")
    srd(16, 6, 1024)
    e("s_lshl_b32 s20, s3, 2")
    e("v_lshlrev_b32 v13, 1, v8")
    e("v_add_u32 v13, s20, v13")
    e("buffer_load_ushort v13, v13, s[16:19], 0 offen")
    e("v_mul_u32_u24 v14, 144, v6")
    e("v_add_u32 v14, v14, v12")
    e("v_lshl_add_u32 v14, v9, 6, v14")
    e("v_lshl_add_u32 v14, v7, 3, v14")
    e("v_lshlrev_b32 v15, 7, v6")
    e("v_lshl_add_u32 v15, v9, 6, v15")
    e("v_lshl_add_u32 v15, v7, 3, v15")
    e("v_lshl_add_u32 v15, v8, 12, v15")
    e("s_lshl_b32 s21, s3, 13")
    e(f"s_add_u32 s21, s21, {G.YA_OFF}")
    e("s_waitcnt vmcnt(0)")
    e("v_lshlrev_b32 v13, 16, v13")
    for g in range(4):
        e(f"ds_read_b64 v[16:17], v14 offset:{31*144 + 16*g}")
        e("s_waitcnt lgkmcnt(0)")
        x = 24
        e("v_lshlrev_b32 v20, 16, v16"); e("v_and_b32 v21, 0xffff0000, v16")
        e("v_lshlrev_b32 v22, 16, v17"); e("v_and_b32 v23, 0xffff0000, v17")
        for j in range(4):
            e(f"v_mul_f32 v{20+j}, v{20+j}, v13")
            e(f"v_mov_b32 v{x+j}, v{ACC+4*g+j}")
        G.rbf_inplace(20, 21, 30); G.rbf_inplace(22, 23, 30)
        G.rbf_inplace(x, x+1, 30); G.rbf_inplace(x+2, x+3, 30)
        for j in range(4):
            e(f"v_add_f32 v{x+j}, v{x+j}, v{20+j}")
        e(f"v_cvt_pk_bf16_f32 v32, v{x}, v{x+1}")
        e(f"v_cvt_pk_bf16_f32 v33, v{x+2}, v{x+3}")
        e(f"buffer_store_dwordx2 v[32:33], v15, s[8:11], s21 offen offset:{16*g}")
    if STAMP:
        e("s_waitcnt vmcnt(0)")
        e("s_memtime s[46:47]")
        e("s_load_dwordx2 s[48:49], s[0:1], 120")
        e("s_waitcnt lgkmcnt(0)")
        srd(52, 48, 256)
        e("s_cmp_lg_u32 s2, 300")
        e("s_cbranch_scc1 mid_end")
        e("v_cmp_eq_u32 vcc, 0, v0")
        e("s_and_saveexec_b64 s[56:57], vcc")
        e("s_cbranch_execz mid_end")
        for i in range(4):
            e(f"s_sub_u32 s58, s{40+2*i}, s40")
            e(f"v_mov_b32 v1, s58")
            e(f"v_mov_b32 v2, {16+4*i}")
            e("buffer_store_dword v1, v2, s[52:55], 0 offen")
    e("mid_end:")
    e("s_endpgm")

    e(".p2align 8")
    e("fin_kernel:")
    e(f"s_cmp_ge_u32 s2, {N_FIN}")
    e("s_cbranch_scc1 fin_end")
    e("s_load_dwordx2 s[4:5], s[0:1], 128")
    e("s_waitcnt lgkmcnt(0)")
    srd(8, 4, G.WS_REC)
    if STAMP: e("s_memtime s[40:41]")
    e("s_and_b32 s12, s2, 7")
    e("s_lshl_b32 s12, s12, 2")
    e("s_lshr_b32 s13, s2, 6")
    e("s_add_u32 s12, s12, s13")
    e("s_bfe_u32 s13, s2, 0x30003")
    e("s_mul_i32 s14, s12, 229376")
    e(f"s_add_u32 s14, s14, {G.H_OFF}")
    e("s_mul_i32 s15, s13, 229376")
    e(f"s_add_u32 s15, s15, {G.W2T_OFF}")
    e("v_lshrrev_b32 v5, 6, v0")
    e("v_and_b32 v6, 31, v0")
    e("v_bfe_u32 v7, v0, 5, 1")
    e("v_lshrrev_b32 v8, 1, v5")
    e("v_and_b32 v9, 1, v5")
    e("v_bfe_u32 v1, v0, 4, 2")
    e("v_and_b32 v2, 15, v0")
    e("s_mov_b32 s21, 3584")
    for i in range(4):
        e(f"v_add_u32 v3, {4*i}, v1")
        e("v_xor_b32 v4, v2, v3")
        e("v_lshl_add_u32 v3, v5, 4, v3")
        e("v_mul_lo_u32 v3, v3, s21")
        e(f"v_lshl_add_u32 v{112+i}, v4, 4, v3")
    e("v_readfirstlane_b32 s36, v5")
    e("s_nop 3")
    e("s_lshl_b32 s36, s36, 12")
    e("v_lshl_add_u32 v10, v8, 5, v6")
    e("v_and_b32 v11, 15, v10")
    e("v_xor_b32 v11, v11, v7")
    e("v_lshlrev_b32 v10, 8, v10")
    e("v_lshl_add_u32 v12, v9, 5, v6")
    e("v_and_b32 v13, 15, v12")
    e("v_xor_b32 v13, v13, v7")
    e("v_lshlrev_b32 v12, 8, v12")
    e("v_add_u32 v12, 16384, v12")
    for ks in range(8):
        e(f"v_xor_b32 v1, {2*ks}, v11")
        e(f"v_lshl_add_u32 v{116+ks}, v1, 4, v10")
        e(f"v_add_u32 v{132+ks}, 0x10000, v{116+ks}")
        e(f"v_xor_b32 v1, {2*ks}, v13")
        e(f"v_lshl_add_u32 v{124+ks}, v1, 4, v12")
        e(f"v_add_u32 v{140+ks}, 0x10000, v{124+ks}")
    ACC = 64
    for i in range(16):
        e(f"v_mov_b32 v{ACC+i}, 0")
    def floads(c):
        slot = (c % 4) * 32768
        for which, base in ((0, 14), (1, 15)):
            e(f"s_add_u32 s16, s{base}, {c*256}")
            for i in range(4):
                e(f"s_add_u32 s37, s36, {slot + which*16384 + i*1024}")
                e("s_mov_b32 m0, s37")
                e("s_nop 0")
                e(f"buffer_load_dwordx4 v{112+i}, s[8:11], s16 offen lds")
    e("s_load_dwordx2 s[6:7], s[0:1], 104")
    e("s_load_dwordx2 s[24:25], s[0:1], 0")
    e("s_load_dwordx2 s[26:27], s[0:1], 112")
    e("s_waitcnt lgkmcnt(0)")
    srd(16, 6, 1024)
    srd(28, 24, 2048*1024)
    srd(32, 26, 2048*1024)
    e("s_lshl_b32 s20, s13, 6")
    e("v_lshl_add_u32 v12, v9, 5, v6")
    e("v_add_u32 v12, s20, v12")
    e("v_lshlrev_b32 v13, 1, v12")
    e("buffer_load_ushort v14, v13, s[16:19], 0 offen")
    e("s_lshl_b32 s20, s12, 6")
    e("v_lshlrev_b32 v15, 5, v8")
    e("v_lshl_add_u32 v15, v7, 2, v15")
    e("v_add_u32 v15, s20, v15")
    e("v_lshlrev_b32 v16, 12, v12")
    e("v_lshl_add_u32 v16, v15, 1, v16")
    e("v_lshlrev_b32 v17, 10, v15")
    e("v_add_u32 v17, v17, v13")
    e(f"s_mov_b32 s22, {G.YA_OFF}")
    for g in range(4):
        e(f"buffer_load_dwordx2 {vr(48+2*g,2)}, v16, s[8:11], s22 offen offset:{16*g}")
        e(f"s_mov_b32 s23, {8*g*1024}")
        for j in range(4):
            e(f"buffer_load_ushort v{32+4*g+j}, v17, s[28:31], s23 offen offset:{j*1024}")
    floads(0); floads(1); floads(2)
    e("s_waitcnt vmcnt(16)")
    e("s_barrier")
    if STAMP: e("s_memtime s[42:43]")
    for c in range(14):
        if c + 3 < 14: floads(c+3)
        o = (c % 4) * 32768
        def frd2(ks):
            sl = ks & 3
            hi = 16 if o >= 65536 else 0
            e(f"ds_read_b128 {vr(80+8*sl,4)}, v{116+hi+ks} offset:{o % 65536}")
            e(f"ds_read_b128 {vr(84+8*sl,4)}, v{124+hi+ks} offset:{o % 65536}")
        for ks in range(3): frd2(ks)
        for ks in range(8):
            sl = ks & 3
            if ks + 3 < 8:
                frd2(ks+3)
                e("s_waitcnt lgkmcnt(6)")
            else:
                e(f"s_waitcnt lgkmcnt({2*(7-ks)})")
            e(f"v_mfma_f32_32x32x16_bf16 {vr(ACC,16)}, {vr(80+8*sl,4)}, {vr(84+8*sl,4)}, {vr(ACC,16)}")
        if c < 13:
            e(f"s_waitcnt vmcnt({8*min(2, 12-c)})")
            e("s_barrier")
    e("s_nop 15")
    e("s_nop 7")
    if STAMP: e("s_memtime s[44:45]")
    e("v_lshlrev_b32 v14, 16, v14")
    for g in range(4):
        x = 24
        for j in range(4):
            e(f"v_mov_b32 v{x+j}, v{ACC+4*g+j}")
            e(f"v_lshlrev_b32 v{20+j}, 16, v{32+4*g+j}")
        G.rbf_inplace(x, x+1, 30); G.rbf_inplace(x+2, x+3, 30)
        for j in range(4):
            e(f"v_add_f32 v{x+j}, v{x+j}, v14")
        G.rbf_inplace(x, x+1, 30); G.rbf_inplace(x+2, x+3, 30)
        e(f"v_lshlrev_b32 v31, 16, v{48+2*g}"); e("v_add_f32 v20, v20, v31")
        e(f"v_and_b32 v31, 0xffff0000, v{48+2*g}"); e("v_add_f32 v21, v21, v31")
        e(f"v_lshlrev_b32 v31, 16, v{49+2*g}"); e("v_add_f32 v22, v22, v31")
        e(f"v_and_b32 v31, 0xffff0000, v{49+2*g}"); e("v_add_f32 v23, v23, v31")
        G.rbf_inplace(20, 21, 30); G.rbf_inplace(22, 23, 30)
        for j in range(4):
            e(f"v_add_f32 v{x+j}, v{x+j}, v{20+j}")
        e(f"v_cvt_pk_bf16_f32 v{56+2*g}, v{x}, v{x+1}")
        e(f"v_cvt_pk_bf16_f32 v{57+2*g}, v{x+2}, v{x+3}")
        e(f"s_mov_b32 s23, {8*g*1024}")
        e(f"buffer_store_short v{56+2*g}, v17, s[32:35], s23 offen offset:0")
        e(f"buffer_store_short_d16_hi v{56+2*g}, v17, s[32:35], s23 offen offset:1024")
        e(f"buffer_store_short v{57+2*g}, v17, s[32:35], s23 offen offset:2048")
        e(f"buffer_store_short_d16_hi v{57+2*g}, v17, s[32:35], s23 offen offset:3072")
    if STAMP:
        e("s_waitcnt vmcnt(0)")
        e("s_memtime s[46:47]")
        e("s_load_dwordx2 s[48:49], s[0:1], 120")
        e("s_waitcnt lgkmcnt(0)")
        srd(52, 48, 256)
        e("s_cmp_lg_u32 s2, 9")
        e("s_cbranch_scc1 fin_end")
        e("v_cmp_eq_u32 vcc, 0, v0")
        e("s_and_saveexec_b64 s[56:57], vcc")
        e("s_cbranch_execz fin_end")
        for i in range(4):
            e(f"s_sub_u32 s58, s{40+2*i}, s40")
            e(f"v_mov_b32 v1, s58")
            e(f"v_mov_b32 v2, {4*i}")
            e("buffer_store_dword v1, v2, s[52:55], 0 offen")
    e("fin_end:")
    e("s_endpgm")
```
